```python
import torch

def _softmax(x, axis=-1):
    return torch.softmax(x, dim=axis)
def _gelu(x):
    return torch.nn.functional.gelu(x, approximate="tanh")
def _silu(x):
    return torch.nn.functional.silu(x)
def _sigmoid(x):
    return torch.sigmoid(x)
def _layernorm(x, axis=-1, eps=1e-5):
    m = x.mean(dim=axis, keepdim=True)
    v = x.var(dim=axis, keepdim=True, unbiased=False)
    return (x - m) / torch.sqrt(v + eps)
def _scatter_add(tgt, idx, src, axis=0):
    return tgt.clone().index_add_(axis, idx, src)
def _segment_sum(src, seg, n):
    out = torch.zeros((n,) + src.shape[1:], dtype=src.dtype)
    return out.index_add_(0, seg, src)
def _pad(x, pw):
    flat = tuple(v for pair in reversed(pw) for v in pair)
    return torch.nn.functional.pad(x, flat)

kernel_name = 'parallel_sum__softmax_full_mha__moe_arch_mod__prompt'

def setup_inputs():

    _w = (lambda a: (lambda t: t.to(torch.bfloat16) if t.is_floating_point() else t)(torch.as_tensor(a)))
    def _A_setup():
        B, S, D = 1, 2048, 640
        return {
            "x": _w((lambda *s: torch.randn(*s, dtype=torch.bfloat16) * 0.05)(B, S, D)),
            "wqkv": _w((lambda *s: torch.randn(*s, dtype=torch.bfloat16) * 0.1)(D, 3 * D)),
            "wo": _w((lambda *s: torch.randn(*s, dtype=torch.bfloat16) * 0.05)(D, D)),
        }
    _A_in = _A_setup()

    def _B_setup():
        B, S, D, F, C = 1, 2048, 640, 1536, 2
        return {
            "x": _w((lambda *s: torch.randn(*s, dtype=torch.bfloat16) * 0.05)(B, S, D)),
            "w_r": _w((lambda *s: torch.randn(*s, dtype=torch.bfloat16) * 3.2)(D)),
            "w_gate": _w((lambda *s: torch.randn(*s, dtype=torch.bfloat16) * 0.1)(D, F)),
            "w_up": _w((lambda *s: torch.randn(*s, dtype=torch.bfloat16) * 0.1)(D, F)),
            "w_down": _w((lambda *s: torch.randn(*s, dtype=torch.bfloat16) * 0.1)(F, D)),
        }
    _B_in = _B_setup()

    return {
        "A_x": _A_in["x"],
        "A_wqkv": _A_in["wqkv"],
        "A_wo": _A_in["wo"],
        "B_x": _B_in["x"],
        "B_w_r": _B_in["w_r"],
        "B_w_gate": _B_in["w_gate"],
        "B_w_up": _B_in["w_up"],
        "B_w_down": _B_in["w_down"],
    }

def reference(A_x, A_wqkv, A_wo, B_x, B_w_r, B_w_gate, B_w_up, B_w_down):
    def _A_ref(x, wqkv, wo):
        B, S, D = x.shape
        H = 32; Dh = D // H
        qkv = (lambda x, *d: x.permute(*d))((x @ wqkv).reshape(B, S, 3, H, Dh), 2, 0, 3, 1, 4)
        q, k, v = qkv[0], qkv[1], qkv[2]
        scale = Dh ** -0.5
        scores = torch.einsum("bhqd,bhkd->bhqk", q, k) * scale
        p = _softmax(scores, axis=-1)
        o = torch.einsum("bhqk,bhkd->bhqd", p, v)
        return (lambda x, *d: x.permute(*d))(o, 0, 2, 1, 3).reshape(B, S, D) @ wo

    def _B_ref(x, w_r, w_gate, w_up, w_down):
        B, S, D = x.shape
        C = 2
        r = x @ w_r
        idx = torch.argsort(-r, axis=-1)[:, :C]
        idx_e = (lambda x, n, axis: torch.repeat_interleave(x, n, dim=axis))(idx.reshape(B, C, 1), D, axis=2)
        x_sel = (lambda x, i, axis: torch.take_along_dim(x, i, dim=axis))(x, idx_e, axis=1)
        g = _silu(x_sel @ w_gate)
        u = x_sel @ w_up
        y = (g * u) @ w_down
        r_sel = _sigmoid((lambda x, i, axis: torch.take_along_dim(x, i, dim=axis))(r, idx, axis=1))
        y = y * r_sel.reshape(B, C, 1)
        b_off = (torch.arange(B) * S).reshape(B, 1)
        flat_idx = (idx + b_off).reshape(B * C)
        zero = (x * 0.0).reshape(B * S, D)
        upd = _scatter_add(zero, flat_idx, y.reshape(B * C, D), axis=0)
        return x + upd.reshape(B, S, D)

    x = A_x
    xn = _layernorm(x, axis=-1)
    return x + _A_ref(xn, A_wqkv, A_wo) + _B_ref(xn, B_w_r, B_w_gate, B_w_up, B_w_down)
```

```python
import re

class Ins:
    __slots__ = ('text', 'op', 'ops', 'kind', 'wv', 'rv', 'ws', 'rs', 'passes', 'mA', 'mB', 'mC', 'mD',
                 'trans', 'dpp', 'label', 'target', 'wide_store', 'ldsdma', 'states', 'dot', 'auto', 'opsel')

TRANS = ('v_exp_', 'v_log_', 'v_rcp_', 'v_rsq_', 'v_sqrt_', 'v_sin_', 'v_cos_')

def regs_of(tok):
    tok = tok.strip()
    tok = re.sub(r'^-', '', tok)
    m = re.match(r'^abs\((.*)\)$', tok)
    if m: tok = m.group(1)
    m = re.match(r'^\|(.*)\|$', tok)
    if m: tok = m.group(1)
    m = re.match(r'^([vas])(\d+)$', tok)
    if m: return m.group(1), {int(m.group(2))}
    m = re.match(r'^([vas])\[(\d+):(\d+)\]$', tok)
    if m: return m.group(1), set(range(int(m.group(2)), int(m.group(3)) + 1))
    if tok == 'vcc': return 's', {106, 107}
    if tok == 'vcc_lo': return 's', {106}
    if tok == 'vcc_hi': return 's', {107}
    if tok == 'm0': return 's', {124}
    if tok == 'exec': return 's', {126, 127}
    if tok == 'exec_lo': return 's', {126}
    if tok == 'exec_hi': return 's', {127}
    return None, set()

def vset(tok):
    k, s = regs_of(tok)
    if k == 'v': return set(s)
    if k == 'a': return {1000 + x for x in s}
    return set()
def sset(tok):
    k, s = regs_of(tok)
    return set(s) if k == 's' else set()

def split_ops(s):
    out, depth, cur = [], 0, ''
    for ch in s:
        if ch in '[(': depth += 1
        if ch in '])': depth -= 1
        if ch == ',' and depth == 0:
            out.append(cur.strip()); cur = ''
        else: cur += ch
    if cur.strip(): out.append(cur.strip())
    return out

def mfma_passes(op):
    if '32x32x4' in op and 'bf16' in op: return 16
    if '32x32x16' in op or '32x32x8' in op: return 8
    if '16x16x32' in op or '16x16x16' in op: return 4
    if '4x4x4' in op: return 2
    raise ValueError(op)

def parse(text):
    i = Ins()
    i.text = text; i.wv = set(); i.rv = set(); i.ws = set(); i.rs = set(); i.passes = 0
    i.mA = i.mB = i.mC = i.mD = set(); i.trans = False; i.dpp = False; i.label = None; i.target = None
    i.wide_store = set(); i.ldsdma = False; i.states = 1; i.dot = False; i.auto = False; i.opsel = False
    t = text.split(';')[0].strip()
    i.op = ''; i.ops = []; i.kind = 'none'
    if not t: i.states = 0; i.kind = 'dir'; return i
    if t.endswith(':'):
        i.label = t[:-1]; i.states = 0; i.kind = 'label'; return i
    if t.startswith('.'):
        i.states = 0; i.kind = 'dir'; return i
    m = re.match(r'^(\S+)\s*(.*)$', t)
    op, rest = m.group(1), m.group(2)
    i.op = op
    ops = split_ops(rest)
    mods = ''
    if ops:
        parts = ops[-1].split(None, 1)
        ops[-1] = parts[0]
        if len(parts) > 1: mods = parts[1]
    i.ops = ops
    if op == 's_nop':
        i.kind = 'nop'; i.states = int(ops[0], 0) + 1; return i
    if op.startswith('s_cbranch') or op == 's_branch':
        i.kind = 'branch'; i.target = ops[0]; return i
    if op == 's_endpgm': i.kind = 'end'; return i
    if op.startswith('s_'):
        i.kind = 'salu'
        nodst = ('s_cmp', 's_waitcnt', 's_barrier', 's_setprio', 's_sleep', 's_bitcmp')
        if not op.startswith(nodst) and ops:
            i.ws |= sset(ops[0])
            for o in ops[1:]: i.rs |= sset(o)
        else:
            for o in ops: i.rs |= sset(o)
        if 'saveexec' in op: i.ws |= {126, 127}
        return i
    if op.startswith('v_mfma'):
        i.kind = 'mfma'; i.passes = mfma_passes(op)
        i.mD = vset(ops[0]); i.mA = vset(ops[1]); i.mB = vset(ops[2]); i.mC = vset(ops[3])
        i.wv = set(i.mD); i.rv = i.mA | i.mB | i.mC
        return i
    if op.startswith('v_'):
        i.kind = 'valu'
        i.trans = op.startswith(TRANS)
        i.dpp = ('_dpp' in op) or ('quad_perm' in mods) or ('row_' in mods)
        i.dot = op.startswith('v_dot')
        i.opsel = ('sdwa' in op and 'dst_sel:DWORD' not in mods)
        if op == 'v_nop': return i
        if op.startswith('v_cmp'):
            i.ws |= sset(ops[0])
            srcs = ops[1:]
            if op.startswith('v_cmpx'): i.ws |= {126, 127}
        elif op.startswith(('v_readfirstlane', 'v_readlane')):
            i.ws |= sset(ops[0]); srcs = ops[1:]
        elif op.startswith('v_permlane'):
            i.wv |= vset(ops[0]) | vset(ops[1]); srcs = ops
        elif '_co_' in op:
            i.wv |= vset(ops[0]); i.ws |= sset(ops[1]); srcs = ops[2:]
        else:
            i.wv |= vset(ops[0]); srcs = ops[1:]
            if op.startswith(('v_fmac', 'v_dot2c', 'v_writelane', 'v_pk_fmac')) or i.dpp or 'UNUSED_PRESERVE' in mods:
                srcs = ops
        for o in srcs:
            i.rv |= vset(o); i.rs |= sset(o)
        return i
    if op.startswith('ds_'):
        i.kind = 'ds'
        if op.startswith(('ds_read', 'ds_bpermute', 'ds_permute', 'ds_swizzle')) or '_rtn' in op:
            i.wv |= vset(ops[0])
            for o in ops[1:]: i.rv |= vset(o)
        else:
            for o in ops: i.rv |= vset(o)
        return i
    if op.startswith(('buffer_', 'global_')):
        i.kind = 'vmem'
        allm = mods.split()
        if op.startswith('buffer_load') and 'lds' in allm:
            i.ldsdma = True
            for o in ops: i.rv |= vset(o); i.rs |= sset(o)
        elif 'load' in op:
            i.wv |= vset(ops[0])
            for o in ops[1:]: i.rv |= vset(o); i.rs |= sset(o)
        else:
            for o in ops: i.rv |= vset(o); i.rs |= sset(o)
            if 'atomic' in op and 'sc0' in allm: i.wv |= vset(ops[0])
            if op.endswith(('dwordx3', 'dwordx4')):
                i.wide_store = vset(ops[0] if op.startswith('buffer_') else ops[1])
        return i
    raise ValueError('cannot parse: ' + text)

P_OVER = {2: 4, 4: 6, 8: 10, 16: 18}
P_READ = {2: 5, 4: 8, 8: 12, 16: 20}
P_WAR = {2: 1, 4: 3, 8: 7, 16: 15}

def need(p, c):
    n = 0
    if p.kind == 'valu':
        if c.kind == 'mfma' and p.wv & c.rv: n = max(n, 3 if p.dot else 2)
        if c.kind == 'valu':
            if p.trans and not c.trans and p.wv & c.rv: n = max(n, 1)
            if p.opsel and p.wv & (c.rv | c.wv): n = max(n, 1)
            if c.op.startswith('v_permlane') and p.wv & c.rv: n = max(n, 2)
            if c.dpp and p.wv & c.rv: n = max(n, 2)
            if c.op.startswith(('v_readlane', 'v_readfirstlane')) and p.wv & c.rv: n = max(n, 1)
            if p.ws & c.rs: n = max(n, 4 if c.op.startswith(('v_readlane', 'v_writelane')) else 2)
            if p.dot and p.wv & (c.rv | c.wv):
                if c.op == p.op:
                    ab = set()
                    for o in c.ops[1:3]: ab |= vset(o)
                    if p.wv & ab: n = max(n, 3)
                else: n = max(n, 3)
        if p.dot and c.kind in ('ds', 'vmem') and p.wv & (c.rv | c.wv): n = max(n, 3)
        if c.kind == 'vmem' and p.ws & c.rs: n = max(n, 5)
        if c.kind == 'salu' and p.ws & c.rs: n = max(n, 1)
        if p.ws & {126, 127}: n = max(n, 5)
    if p.kind == 'mfma':
        P = p.passes
        if c.kind == 'mfma':
            if p.mD & c.mC:
                if p.mD == c.mC and p.passes == c.passes: n = max(n, 2 if P == 2 else 0)
                else: n = max(n, P_OVER[P])
            if p.mD & (c.mA | c.mB): n = max(n, P_READ[P])
            if p.mD & c.mD and not (p.mD & c.mC): n = max(n, P_OVER[P])
        elif c.kind in ('valu', 'ds', 'vmem'):
            if p.mD & (c.rv | c.wv): n = max(n, P_READ[P])
            if c.kind == 'valu' and p.mC & c.wv: n = max(n, P_WAR[P])
    if p.kind == 'salu':
        if 124 in p.ws and c.ldsdma: n = max(n, 1)
    if p.kind == 'vmem' and p.wide_store and p.wide_store & c.wv:
        n = max(n, 2 if c.kind in ('valu', 'mfma') else 1)
    return n

class Prog:
    def __init__(self):
        self.lines = []
    def __call__(self, text):
        for l in text.split('\n'):
            if l.strip(): self.lines.append(l.strip())
    def fix(self, verbose=False):
        ins = [parse(l) for l in self.lines]
        inserted = []
        changed = True
        while changed:
            changed = False
            labels = {x.label: k for k, x in enumerate(ins) if x.label}
            preds = {}
            for k, x in enumerate(ins):
                if x.kind == 'branch' and x.target in labels:
                    preds.setdefault(labels[x.target], []).append(k)
            for k, c in enumerate(ins):
                if c.states == 0 or c.kind in ('nop', 'branch', 'end'): continue
                worst = 0; why = None
                stack = [(k, 0)]; seen = {}
                while stack:
                    j, d = stack.pop()
                    if seen.get(j, 99) <= d: continue
                    seen[j] = d
                    nxt = []
                    if j in preds: nxt += preds[j]
                    if j > 0:
                        q = ins[j - 1]
                        if not (q.kind == 'end' or q.op == 's_branch'): nxt.append(j - 1)
                    for q in nxt:
                        p = ins[q]
                        if p.states:
                            r = need(p, c) - d
                            if r > worst: worst = r; why = p
                        nd = d + p.states
                        if nd < 21: stack.append((q, nd))
                if worst > 0:
                    w = worst
                    while w > 0:
                        n = min(w, 16)
                        x = parse(f's_nop {n-1}'); x.auto = True
                        ins.insert(k, x); w -= n
                    inserted.append((worst, why.text, c.text))
                    changed = True
                    break
        if verbose:
            for w, a, b in inserted: print(f'  nop {w}: {a}  ->  {b}')
        self.lines = [x.text for x in ins]
        return inserted
    def text(self):
        out = []
        for l in self.lines:
            if l.endswith(':') or l.startswith('.'): out.append(l)
            else: out.append('    ' + l)
        return '\n'.join(out) + '\n'

def vr(a, n=1):
    return f'v{a}' if n == 1 else f'v[{a}:{a+n-1}]'
def sr(a, n=1):
    return f's{a}' if n == 1 else f's[{a}:{a+n-1}]'

class Alloc:
    def __init__(self, start=0, limit=256):
        self.n = start; self.limit = limit; self.names = {}
    def __call__(self, cnt=1, align=None, name=None):
        if align is None: align = 1 if cnt == 1 else 2
        self.n = (self.n + align - 1) // align * align
        r = self.n; self.n += cnt
        assert self.n <= self.limit, f'out of registers {self.n}'
        return r
```

```python
from asmlib import *
import math, struct
NAME = 'parallel_sum__softmax_full_mha__moe_arch_mod__prompt'
QM    = 0x000000
QT    = 0x200000
KVM   = 0x280000
KT    = 0x700000
OM    = 0x780000
OT    = 0x980000
STATS = 0xA00000
CAND  = 0xA04000
YACC  = 0xA05000
FLG   = 0xA10000
F1 = FLG
F2 = F1 + 256 * 256
FM = F2 + 1024 * 256
NFLAG = 256 + 1024 + 192
WS_END = FLG + NFLAG * 256
ONES = 0x3f803f80
CSCALE = 20 ** -0.5 * math.log2(math.e)
H1 = 81920
LDS_BYTES = 163840
SPIN_MAX = 200000

sWG, sW = 2, 3
pX, pWQ, pWO, pWR, pG, pU, pD, pOUT, pDBG, pWS = 64, 66, 68, 72, 74, 76, 78, 80, 82, 84
SWS = 60
vL, vL16 = 0, 1

def f2u(x): return struct.unpack('<I', struct.pack('<f', x))[0]

def srd(p, d, base, nbytes):
    p(f's_mov_b32 s{d}, s{base}')
    p(f's_mov_b32 s{d+1}, s{base+1}')
    p(f's_mov_b32 s{d+2}, {nbytes}')
    p(f's_mov_b32 s{d+3}, 0x00020000')
def S4(d): return f's[{d}:{d+3}]'

def kdesc(name, nv, ns):
    acc = (nv + 3) // 4 * 4
    return f'''.p2align 6
.amdhsa_kernel {name}
  .amdhsa_next_free_vgpr {nv}
  .amdhsa_next_free_sgpr {ns}
  .amdhsa_accum_offset {acc}
  .amdhsa_group_segment_fixed_size 0
  .amdhsa_kernarg_size 88
  .amdhsa_user_sgpr_count 2
  .amdhsa_user_sgpr_kernarg_segment_ptr 1
  .amdhsa_system_sgpr_workgroup_id_x 1
  .amdhsa_float_denorm_mode_32 3
.end_amdhsa_kernel
'''

def entry(p, name, endlabel):
    p(f'.globl {name}')
    p('.p2align 8')
    p(f'.type {name},@function')
    p(f'{name}:')
    p('s_cmp_ge_u32 s2, 256')
    p(f's_cbranch_scc1 {endlabel}')
    p('s_load_dwordx16 s[64:79], s[0:1], 0')
    p('s_load_dwordx4 s[80:83], s[0:1], 64')
    p('s_load_dwordx2 s[84:85], s[0:1], 80')
    p('v_lshrrev_b32 v1, 6, v0')
    p('v_and_b32 v0, 63, v0')
    p(f'v_readfirstlane_b32 s{sW}, v1')
    p('v_lshlrev_b32 v1, 4, v0')

def ln_stats(p, vsum, vsq, vm, vr_, t0, t1):
    p(f'v_mul_f32 v{t0}, {hex(f2u(1/640))}, v{vsum}')
    p(f'v_mul_f32 v{t1}, {hex(f2u(1/640))}, v{vsq}')
    p(f'v_fma_f32 v{t1}, -v{t0}, v{t0}, v{t1}')
    p(f'v_max_f32 v{t1}, 0, v{t1}')
    p(f'v_cvt_pk_bf16_f32 v{t0}, v{t0}, v{t1}')
    p(f'v_lshlrev_b32 v{vm}, 16, v{t0}')
    p(f'v_and_b32 v{t1}, 0xffff0000, v{t0}')
    p(f'v_add_f32 v{t1}, {hex(f2u(1e-5))}, v{t1}')
    p(f'v_cvt_pk_bf16_f32 v{t1}, v{t1}, v{t1}')
    p(f'v_and_b32 v{t1}, 0xffff0000, v{t1}')
    p(f'v_sqrt_f32 v{t1}, v{t1}')
    p(f'v_cvt_pk_bf16_f32 v{t1}, v{t1}, v{t1}')
    p(f'v_and_b32 v{t1}, 0xffff0000, v{t1}')
    p(f'v_rcp_f32 v{vr_}, v{t1}')

def wave_max_u32(p, src, t, sd, st):
    p(f'v_max_u32_dpp v{t}, v{src}, v{src} quad_perm:[1,0,3,2] row_mask:0xf bank_mask:0xf')
    for mode in ('quad_perm:[2,3,0,1]', 'row_half_mirror', 'row_mirror'):
        p(f'v_max_u32_dpp v{t}, v{t}, v{t} {mode} row_mask:0xf bank_mask:0xf')
    for k in range(4): p(f'v_readlane_b32 s{st+k}, v{t}, {16*k}')
    p(f's_max_u32 s{st}, s{st}, s{st+1}')
    p(f's_max_u32 s{st+2}, s{st+2}, s{st+3}')
    p(f's_max_u32 s{sd}, s{st}, s{st+2}')

def top2_vec(p, v, t, s1, s2, st):
    wave_max_u32(p, v, t, s1, st)
    p(f'v_cmp_ne_u32 vcc, s{s1}, v{v}')
    p(f'v_cndmask_b32 v{v}, 0, v{v}, vcc')
    wave_max_u32(p, v, t, s2, st)

_pn = [0]
def poll(p, loads, cnt):
    _pn[0] += 1
    n = _pn[0]
    p(f's_mov_b32 s{cnt}, 0')
    p(f'POLL{n}:')
    for d, a, r, so in loads:
        p(f'buffer_load_dword v{d}, v{a}, {S4(r)}, {so} offen sc1')
    p(f's_add_u32 s{cnt}, s{cnt}, 1')
    p(f's_cmp_gt_u32 s{cnt}, {SPIN_MAX}')
    p(f's_cbranch_scc1 POLLX{n}')
    p('s_waitcnt vmcnt(0)')
    d0 = loads[0][0]
    for d, a, r, so in loads[1:]:
        p(f'v_min_u32 v{d0}, v{d0}, v{d}')
    p(f'v_cmp_eq_u32 vcc, 0, v{d0}')
    p('s_nop 0')
    p(f's_cbranch_vccnz POLL{n}')
    p(f'POLLX{n}:')
    p('s_waitcnt vmcnt(0)')

def set_flag(p, r, so, t, imm=0):
    p(f'v_mov_b32 v{t}, 1')
    p('s_mov_b64 exec, 1')
    p(f'buffer_store_dword v{t}, off, {S4(r)}, {so} offset:{imm} sc1')
    p('s_mov_b64 exec, -1')
```

```python
from mcommon import *

ST_M = 131072; ST_R = ST_M + 512; ST_C = ST_M + 1024

def phase1(p, fused, opt=()):
    sMB, sNB = 20, 21
    SX, SWQ, SDB = 24, 28, 32
    SC = 'sc1'
    p('s_and_b32 s14, s2, 3')
    p('s_lshl_b32 s14, s14, 2')
    p('s_lshr_b32 s15, s2, 3')
    p('s_and_b32 s16, s15, 3')
    p(f's_add_u32 s{sMB}, s14, s16')
    p('s_and_b32 s14, s2, 4')
    p('s_lshl_b32 s14, s14, 1')
    p('s_lshr_b32 s15, s15, 2')
    p(f's_add_u32 s{sNB}, s14, s15')
    p(f's_cmp_eq_u32 s{sNB}, 15')
    p('s_cbranch_scc1 P1_AUX')
    p(f's_cmp_lt_u32 s{sW}, 4')
    p('s_cbranch_scc1 P1_COMP')
    sLW, sXB, sWB, sCC, sSL, sXO, sWO, sCNT = 36, 37, 38, 39, 40, 41, 42, 43
    p(f's_sub_u32 s{sLW}, s{sW}, 4')
    vx = [2, 3, 4, 5]; vw = [6, 7, 8, 9]
    p('v_lshrrev_b32 v10, 3, v0')
    p('v_mul_u32_u24 v10, 1280, v10')
    p('v_and_b32 v11, 7, v0')
    p('v_lshrrev_b32 v12, 4, v0')
    p('v_xor_b32 v13, v11, v12')
    p('v_xor_b32 v14, 4, v13')
    p(f'v_lshl_add_u32 v{vx[0]}, v13, 4, v10')
    p(f'v_lshl_add_u32 v{vx[1]}, v14, 4, v10')
    p(f'v_add_u32 v{vx[2]}, {2*(10240-1024)}, v{vx[0]}')
    p(f'v_add_u32 v{vx[3]}, {3*(10240-1024)}, v{vx[1]}')
    p(f'v_add_u32 v{vx[1]}, {10240-1024}, v{vx[1]}')
    p('v_mul_u32_u24 v10, 3840, v12')
    p('v_and_b32 v11, 15, v0')
    p('v_lshlrev_b32 v12, 2, v12')
    p('v_xor_b32 v11, v11, v12')
    p(f'v_lshl_add_u32 v{vw[0]}, v11, 4, v10')
    for q in range(1, 4):
        p(f'v_add_u32 v{vw[q]}, {q*(15360-1024)}, v{vw[0]}')
    p(f's_lshl_b32 s14, s{sMB}, 2')
    p(f's_add_u32 s14, s14, s{sLW}')
    p(f's_mul_i32 s{sXB}, s14, 40960')
    p(f's_mul_i32 s{sWB}, s{sLW}, {16*3840}')
    p(f's_lshl_b32 s14, s{sNB}, 8')
    p(f's_add_u32 s{sWB}, s{sWB}, s14')
    p(f's_mul_i32 s14, s{sMB}, 3')
    p(f's_add_u32 s14, s14, s{sNB}')
    p('s_mul_i32 s15, s14, 205')
    p('s_lshr_b32 s15, s15, 11')
    p('s_mul_i32 s15, s15, 10')
    p(f's_sub_u32 s{sCC}, s14, s15')
    if 'norot' in opt: p(f's_mov_b32 s{sCC}, 0')
    p(f's_lshl_b32 s{sSL}, s{sLW}, 12')
    def issue():
        p(f's_lshl_b32 s{sXO}, s{sCC}, 7')
        p(f's_add_u32 s{sXO}, s{sXO}, s{sXB}')
        p(f's_mov_b32 m0, s{sSL}')
        p(f's_mul_i32 s{sWO}, s{sCC}, {64*3840}')
        for q in range(4):
            p(f'buffer_load_dwordx4 v{vx[q]}, {S4(SX)}, s{sXO} offen offset:{q*1024} lds')
        p(f's_add_u32 s{sWO}, s{sWO}, s{sWB}')
        p(f's_add_u32 m0, s{sSL}, 16384')
        p(f's_add_u32 s{sCC}, s{sCC}, 1')
        for q in range(4):
            p(f'buffer_load_dwordx4 v{vw[q]}, {S4(SWQ)}, s{sWO} offen offset:{q*1024} lds')
        p(f's_cmp_eq_u32 s{sCC}, 10')
        p(f's_cselect_b32 s{sCC}, 0, s{sCC}')
        p(f's_add_u32 s{sSL}, s{sSL}, 32768')
        p(f's_and_b32 s{sSL}, s{sSL}, 0x1ffff')
    p(f's_mov_b32 s{sCNT}, 0')
    p('s_waitcnt lgkmcnt(0)')
    srd(p, SX, pX, 2621440)
    srd(p, SWQ, pWQ, 2457600)
    p('; MARK 3')
    p('P1_LD:')
    p(f's_cmp_lt_u32 s{sCNT}, 2')
    p('s_cbranch_scc1 P1_LD2')
    p('s_waitcnt vmcnt(8)')
    p('s_barrier')
    p('P1_LD2:')
    issue()
    p(f's_add_u32 s{sCNT}, s{sCNT}, 1')
    p(f's_cmp_lt_u32 s{sCNT}, 10')
    p('s_cbranch_scc1 P1_LD')
    p('; MARK 4')
    p('s_waitcnt vmcnt(8)')
    p('s_barrier')
    p('s_waitcnt vmcnt(0)')
    p('s_barrier')
    p('; MARK 5')
    if not fused:
        p('s_endpgm')
    else:
        srd(p, SWS, pWS, WS_END)
        srd(p, SDB, pDBG, 256)
        p(f's_cmp_lg_u32 s{sW}, 4')
        p('s_cbranch_scc1 P1_LD3')
        p('v_mov_b32 v2, 128')
        poll(p, [(3, 2, SDB, 0)], 14)
        p('P1_LD3:')
        p('s_barrier')
        p('s_barrier')
        p(f's_cmp_lg_u32 s{sW}, 4')
        p('s_cbranch_scc1 P2_HELP')
        p(f's_lshl_b32 s14, s{sNB}, 4')
        p(f's_add_u32 s14, s14, s{sMB}')
        p(f's_lshl_b32 s14, s14, 8')
        p(f's_add_u32 s14, s14, {F1}')
        set_flag(p, SWS, 's14', 2)
        p('s_branch P2_HELP')
    p('P1_COMP:')
    A = Alloc(2)
    vrow, vhh, t0, t1, t2, t3 = A(), A(), A(), A(), A(), A()
    ax = [[A() for s in range(4)] for i in range(2)]
    aw = [A(), A()]
    vsq = [A(), A()]; un = [A(), A()]
    so = [A() for _ in range(8)]
    vsum = A(4, 4); vcs = A(4, 4); SEL = A(4, 4)
    acc = [[A(16, 4) for j in range(2)] for i in range(2)]
    X = [[A(4, 4) for i in range(2)] for b in range(2)]
    W = [[A(4, 4) for j in range(2)] for b in range(2)]
    E = A(64, 4)
    pr = [A(2, 2), A(2, 2)]
    nv_comp = A.n
    sMW, sNW, sIT = 36, 37, 38
    p(f's_lshr_b32 s{sMW}, s{sW}, 1')
    p(f's_and_b32 s{sNW}, s{sW}, 1')
    p(f'v_and_b32 v{vrow}, 31, v0')
    p(f'v_lshrrev_b32 v{vhh}, 5, v0')
    p(f'v_lshrrev_b32 v{t0}, 1, v{vrow}')
    p(f'v_and_b32 v{t0}, 7, v{t0}')
    p(f'v_xor_b32 v{t0}, v{t0}, v{vhh}')
    p(f's_lshl_b32 s14, s{sMW}, 1')
    p(f's_add_u32 s14, s14, s{sNW}')
    p(f's_lshl_b32 s14, s14, 12')
    p(f'v_lshl_add_u32 v{t1}, v{vrow}, 7, s14')
    for s in range(4):
        p(f'v_xor_b32 v{t2}, {2*s}, v{t0}')
        p(f'v_lshl_add_u32 v{ax[0][s]}, v{t2}, 4, v{t1}')
        p(f'v_xor_b32 v{ax[1][s]}, 4096, v{ax[0][s]}')
    p(f'v_bfe_u32 v{t0}, v0, 2, 2')
    p(f'v_lshl_add_u32 v{t1}, v{vhh}, 3, v{t0}')
    p(f'v_lshlrev_b32 v{t1}, 8, v{t1}')
    p(f's_lshl_b32 s14, s{sNW}, 1')
    p(f's_add_u32 s14, s14, s{sMW}')
    p(f'v_xor_b32 v{t0}, s14, v{t0}')
    p(f'v_lshl_add_u32 v{t1}, v{t0}, 6, v{t1}')
    p(f'v_bfe_u32 v{t0}, v0, 4, 1')
    p(f'v_lshl_add_u32 v{t1}, v{t0}, 5, v{t1}')
    p(f'v_add_u32 v{aw[0]}, 16384, v{t1}')
    p(f'v_mov_b32 v{acc[0][0]}, 0')
    p(f'v_mov_b32 v{acc[0][0]+1}, 0')
    for r in range(2, 64, 2): p(f'v_pk_mov_b32 {vr(acc[0][0]+r,2)}, {vr(acc[0][0],2)}, {vr(acc[0][0],2)}')
    for r in range(0, 8, 2): p(f'v_pk_mov_b32 {vr(vsum+r,2)}, {vr(acc[0][0],2)}, {vr(acc[0][0],2)}')
    for x in vsq: p(f'v_mov_b32 v{x}, 0')
    p(f'v_lshrrev_b32 v{t0}, 2, v0')
    p(f'v_xor_b32 v{t0}, v{t0}, v0')
    p(f'v_and_b32 v{t0}, 4, v{t0}')
    p(f'v_and_b32 v{t1}, 3, v0')
    p(f'v_or_b32 v{t0}, v{t0}, v{t1}')
    p(f'v_cmp_eq_u32 vcc, 0, v{t0}')
    p(f'v_mov_b32 v{t1}, {ONES}')
    p(f'v_cndmask_b32 v{SEL}, 0, v{t1}, vcc')
    for r in range(1, 4): p(f'v_mov_b32 v{SEL+r}, v{SEL}')
    sT0, sT1 = 44, 45
    p(f's_lshl_b32 s14, s{sMB}, 2')
    p(f's_lshl_b32 s15, s{sMW}, 1')
    p(f's_add_u32 s14, s14, s15')
    p(f's_add_u32 s{sT0}, s14, s{sNW}')
    p(f's_xor_b32 s{sT1}, s{sT0}, 1')
    p(f's_cmp_ge_u32 s{sNB}, 10')
    p('s_cbranch_scc1 P1_V')

    def reads(b, s, off):
        L = []
        L.append(f'ds_read_b128 {vr(X[b][0],4)}, v{ax[0][s]} offset:{off}')
        for jj in range(2):
            L.append(f'ds_read_b64_tr_b16 {vr(W[b][0]+2*jj,2)}, v{aw[0]} offset:{off + (16*s+4*jj)*256}')
        L.append(f'ds_read_b128 {vr(X[b][1],4)}, v{ax[1][s]} offset:{off}')
        for jj in range(2):
            L.append(f'ds_read_b64_tr_b16 {vr(W[b][1]+2*jj,2)}, v{aw[1]} offset:{off + (16*s+4*jj)*256}')
        return L
    def mainloop(tag, vmode):
        def step(s, rd):
            b = s & 1
            sq = []
            for r in range(4):
                sq += [f'v_lshlrev_b32 v{un[0]}, 16, v{X[b][0]+r}', f'v_and_b32 v{un[1]}, 0xffff0000, v{X[b][0]+r}',
                       f'v_fmac_f32 v{vsq[0]}, v{un[0]}, v{un[0]}', f'v_fmac_f32 v{vsq[1]}, v{un[1]}, v{un[1]}']
            mm = []
            for (i, j) in ((0, 0), (1, 0), (0, 1), (1, 1)):
                a_, b_ = (X[b][i], W[b][j]) if vmode else (W[b][j], X[b][i])
                mm.append(f'v_mfma_f32_32x32x16_bf16 {vr(acc[i][j],16)}, {vr(a_,4)}, {vr(b_,4)}, {vr(acc[i][j],16)}')
            m1 = f'v_mfma_f32_16x16x32_bf16 {vr(vsum,4)}, {vr(SEL,4)}, {vr(X[b][0],4)}, {vr(vsum,4)}'
            m2 = f'v_mfma_f32_16x16x32_bf16 {vr(vcs,4)}, {vr(SEL,4)}, {vr(W[b][0],4)}, {vr(vcs,4)}'
            if 'nostat' in opt: sq = []; m1 = m2 = ''
            if 'nocomp' in opt: return
            L = [mm[0]] + rd[0:2] + sq[0:3] + [m1] + rd[2:3] + [mm[1]] + rd[3:5] + sq[3:6] + [m2] + rd[5:6] + [mm[2]] + sq[6:11] + [mm[3]] + sq[11:16]
            for l in L: p(l)
        p('s_waitcnt lgkmcnt(0)')
        srd(p, SWS, pWS, WS_END)
        p(f's_mov_b32 s{sIT}, 0')
        p('; MARK 3')
        p('s_barrier')
        p('; MARK 4')
        for l in reads(0, 0, 0): p(l)
        p(f'P1_LOOP{tag}:')
        for half in range(2):
            off = half * 32768
            for s in range(4):
                p('s_waitcnt lgkmcnt(0)')
                if s < 3:
                    step(s, reads(1 - (s & 1), s + 1, off))
                elif half == 0:
                    p('s_barrier')
                    step(s, reads(0, 0, 32768))
                else:
                    p(f's_add_u32 s{sIT}, s{sIT}, 1')
                    p(f's_cmp_eq_u32 s{sIT}, 5')
                    p(f's_cbranch_scc1 P1_TAIL{tag}')
                    for x in ax[0] + ax[1] + aw: p(f'v_xor_b32 v{x}, 0x10000, v{x}')
                    p('s_barrier')
                    step(s, reads(0, 0, 0))
                    p(f's_branch P1_LOOP{tag}')
        p(f'P1_TAIL{tag}:')
        step(3, [])
    def stats_publish():
        p('; MARK 5')
        p(f'v_add_f32 v{vsq[0]}, v{vsq[0]}, v{vsq[1]}')
        p(f'v_mov_b32 v{vsq[1]}, v{vsq[0]}')
        p(f's_lshl_b32 s14, s{sNW}, 1')
        p(f's_add_u32 s14, s14, s{sMW}')
        p(f'v_permlane32_swap_b32 v{vsq[0]}, v{vsq[1]}')
        p(f's_lshl_b32 s14, s14, 7')
        p(f's_add_u32 s14, s14, {ST_C}')
        p(f'v_add_f32 v{vsq[0]}, v{vsq[0]}, v{vsq[1]}')
        p(f'v_lshl_add_u32 v{t2}, v{vrow}, 2, s14')
        p(f'ds_write_b32 v{t2}, v{vcs}')
        ln_stats(p, vsum, vsq[0], pr[0], pr[0]+1, t0, t1)
        p(f's_lshl_b32 s14, s{sMW}, 1')
        p(f's_add_u32 s14, s14, s{sNW}')
        p(f's_lshl_b32 s14, s14, 7')
        p(f's_add_u32 s14, s14, {ST_M}')
        p(f'v_lshl_add_u32 v{t3}, v{vrow}, 2, s14')
        p(f'v_xor_b32 v{pr[0]}, 0x80000000, v{pr[0]}')
        p(f'ds_write_b32 v{t3}, v{pr[0]}')
        p(f'ds_write_b32 v{t3}, v{pr[0]+1} offset:512')
        p('s_waitcnt lgkmcnt(0)')
        p('s_barrier')
        p('; MARK 6')
    def finish():
        p('; MARK 7')
        if fused:
            p('s_waitcnt vmcnt(0)')
            p('s_barrier')
            p('; MARK 8')
            p('s_branch P2_COMP')
        else:
            p('s_endpgm')

    p(f'v_and_b32 v{t0}, 1, v0')
    p(f'v_lshl_add_u32 v{aw[0]}, v{t0}, 4, v{aw[0]}')
    p(f'v_bfe_u32 v{t0}, v0, 1, 1')
    p(f'v_lshl_add_u32 v{aw[0]}, v{t0}, 3, v{aw[0]}')
    p(f'v_xor_b32 v{aw[1]}, 64, v{aw[0]}')
    sTS, sHS, sBM, sBT = 40, 41, 42, 43
    p(f's_mov_b32 s{sTS}, 1024')
    p(f's_mov_b32 s{sHS}, 65536')
    p(f's_mov_b32 s{sBT}, {QT}')
    p(f's_cmp_ge_u32 s{sNB}, 5')
    p(f's_cselect_b32 s{sTS}, 2304, s{sTS}')
    p(f's_cselect_b32 s{sHS}, 147456, s{sHS}')
    p(f's_cselect_b32 s{sBM}, {KVM}, {QM}')
    p(f's_cselect_b32 s{sBT}, {KT}, s{sBT}')
    p(f's_cselect_b32 s14, 5, 0')
    p(f's_sub_u32 s14, s{sNB}, s14')
    p(f's_lshl_b32 s14, s14, 2')
    p(f's_lshl_b32 s15, s{sNW}, 1')
    p(f's_add_u32 s14, s14, s15')
    p(f's_add_u32 s14, s14, s{sMW}')
    tv = E
    for j in range(2):
        if j == 1: p('s_xor_b32 s14, s14, 1')
        p(f's_lshl_b32 s15, s14, 2')
        for q in range(2):
            p(f's_add_u32 s16, s15, {2*q}')
            p(f'v_add_u32 v{t0}, s16, v{vhh}')
            p(f'v_mul_u32_u24 v{t1}, 205, v{t0}')
            p(f'v_lshrrev_b32 v{t1}, 10, v{t1}')
            p(f'v_mul_u32_u24 v{t2}, 5, v{t1}')
            p(f'v_sub_u32 v{t0}, v{t0}, v{t2}')
            p(f'v_cmp_lt_u32 vcc, 2, v{t0}')
            p(f'v_lshlrev_b32 v{t2}, 1, v{t1}')
            p(f'v_subrev_u32 v{t3}, 3, v{t0}')
            p(f'v_addc_co_u32 v{t2}, s[16:17], 0, v{t2}, vcc')
            p(f'v_cndmask_b32 v{t3}, v{t0}, v{t3}, vcc')
            p(f'v_mul_u32_u24 v{tv}, s{sHS}, v{t2}')
            p(f'v_lshl_add_u32 v{tv}, v{t3}, 9, v{tv}')
            p(f'v_add_u32 v{tv}, s{sBM}, v{tv}')
            p(f'v_lshlrev_b32 v{tv+1}, 15, v{t1}')
            p(f'v_add_u32 v{tv+1}, s{sBT}, v{tv+1}')
            p(f'v_cmp_eq_u32 vcc, 2, v{t0}')
            p(f'v_mov_b32 v{tv+2}, s{sTS}')
            p(f'v_mov_b32 v{tv+3}, 512')
            p(f'v_cndmask_b32 v{tv}, v{tv}, v{tv+1}, vcc')
            p(f'v_cndmask_b32 v{tv+2}, v{tv+2}, v{tv+3}, vcc')
            p(f'v_lshl_add_u32 v{tv}, v{vrow}, 4, v{tv}')
            for i in range(2):
                p(f'v_mad_u32_u24 v{so[4*i+2*j+q]}, v{tv+2}, s{sT0+i}, v{tv}')
    mainloop('QK', False)
    stats_publish()
    p(f'v_xor_b32 v{t3}, 128, v{t3}')
    p(f'ds_read_b32 v{pr[1]}, v{t3}')
    p(f'ds_read_b32 v{pr[1]+1}, v{t3} offset:512')
    p(f's_lshl_b32 s14, s{sNW}, 1')
    p(f's_add_u32 s14, s14, s{sMW}')
    p(f's_lshl_b32 s14, s14, 7')
    p(f's_add_u32 s14, s14, {ST_C}')
    p(f'v_lshl_add_u32 v{t0}, v{vhh}, 4, s14')
    p(f'v_xor_b32 v{t1}, 128, v{t0}')
    for j in range(2):
        for g in range(4):
            p(f'ds_read_b128 {vr(E+16*j+4*g,4)}, v{[t0,t1][j]} offset:{32*g}')
    p(f's_cmp_ge_u32 s{sNB}, 5')
    p(f's_cselect_b32 s14, 1.0, {hex(f2u(CSCALE))}')
    p('s_waitcnt lgkmcnt(4)')
    for i in range(2): p(f'v_mul_f32 v{pr[i]+1}, s14, v{pr[i]+1}')
    for j in range(2):
        if j == 1: p('s_waitcnt lgkmcnt(0)')
        for i in range(2):
            a = acc[i][j]
            for q in range(2):
                for k in range(4*q, 4*q+4):
                    p(f'v_pk_fma_f32 {vr(a+2*k,2)}, {vr(pr[i],2)}, {vr(E+16*j+2*k,2)}, {vr(a+2*k,2)} op_sel_hi:[0,1,1]')
                for k in range(4*q, 4*q+4):
                    p(f'v_pk_mul_f32 {vr(a+2*k,2)}, {vr(pr[i],2)}, {vr(a+2*k,2)} op_sel:[1,0] op_sel_hi:[1,1]')
                for k in range(4):
                    p(f'v_cvt_pk_bf16_f32 v{a+8*q+k}, v{a+8*q+2*k}, v{a+8*q+2*k+1}')
                p(f'buffer_store_dwordx4 {vr(a+8*q,4)}, v{so[4*i+2*j+q]}, {S4(SWS)}, 0 offen {SC}')
    finish()

    p('P1_V:')
    p(f'v_and_b32 v{t0}, 3, v0')
    p(f'v_lshl_add_u32 v{aw[0]}, v{t0}, 3, v{aw[0]}')
    p(f'v_xor_b32 v{aw[1]}, 64, v{aw[0]}')
    p(f's_sub_u32 s14, s{sNB}, 10')
    p(f's_lshl_b32 s14, s14, 2')
    p(f's_lshl_b32 s15, s{sNW}, 1')
    p(f's_add_u32 s14, s14, s15')
    p(f's_add_u32 s14, s14, s{sMW}')
    p(f's_mov_b32 s16, 147456')
    for j in range(2):
        if j == 1: p('s_xor_b32 s14, s14, 1')
        o = so[j]
        p(f's_lshl_b32 s15, s14, 5')
        p(f'v_add_u32 v{t0}, s15, v{vrow}')
        p(f'v_mul_u32_u24 v{t1}, 3277, v{t0}')
        p(f'v_lshrrev_b32 v{t1}, 16, v{t1}')
        p(f'v_mul_u32_u24 v{t2}, 20, v{t1}')
        p(f'v_sub_u32 v{t0}, v{t0}, v{t2}')
        p(f'v_mul_u32_u24 v{o}, s16, v{t1}')
        p(f'v_lshl_add_u32 v{o}, v{t0}, 4, v{o}')
        p(f'v_mul_u32_u24 v{t1}, 320, v{vhh}')
        p(f'v_add_u32 v{o}, v{o}, v{t1}')
    for i in range(2):
        p(f's_mul_i32 s{sT0+i}, s{sT0+i}, 2304')
        p(f's_add_u32 s{sT0+i}, s{sT0+i}, {KVM + 1024}')
    mainloop('V', True)
    stats_publish()
    p(f'v_xor_b32 v{t2}, 128, v{t2}')
    p(f'v_mov_b32 v{pr[0]}, v{vcs}')
    p(f'ds_read_b32 v{pr[1]}, v{t2}')
    p(f's_lshl_b32 s14, s{sMW}, 1')
    p(f's_add_u32 s14, s14, s{sNW}')
    p(f's_lshl_b32 s14, s14, 7')
    p(f's_add_u32 s14, s14, {ST_M}')
    p(f'v_lshl_add_u32 v{t0}, v{vhh}, 4, s14')
    p(f'v_xor_b32 v{t1}, 128, v{t0}')
    for i in range(2):
        for g in range(4):
            p(f'ds_read_b128 {vr(E+32*i+4*g,4)}, v{[t0,t1][i]} offset:{32*g}')
            p(f'ds_read_b128 {vr(E+32*i+16+4*g,4)}, v{[t0,t1][i]} offset:{512+32*g}')
        if i == 0: p('s_waitcnt lgkmcnt(0)')
    for i in range(2):
        if i == 1: p('s_waitcnt lgkmcnt(0)')
        for j in range(2):
            a = acc[i][j]
            for f in range(2):
                for k in range(4*f, 4*f+4):
                    p(f'v_pk_fma_f32 {vr(a+2*k,2)}, {vr(pr[j],2)}, {vr(E+32*i+2*k,2)}, {vr(a+2*k,2)} op_sel_hi:[0,1,1]')
                for k in range(4*f, 4*f+4):
                    p(f'v_pk_mul_f32 {vr(a+2*k,2)}, {vr(E+32*i+16+2*k,2)}, {vr(a+2*k,2)}')
                for k in range(4):
                    p(f'v_cvt_pk_bf16_f32 v{a+8*f+k}, v{a+8*f+2*k}, v{a+8*f+2*k+1}')
                p(f'buffer_store_dwordx4 {vr(a+8*f,4)}, v{so[j]}, {S4(SWS)}, s{sT0+i} offen offset:{640*f} {SC}')
    finish()

    p('P1_AUX:')
    SWR = 28
    A = Alloc(2)
    t0, t1, t2, t3, vxo, vwo = A(), A(), A(), A(), A(), A()
    sm = [[A() for _ in range(3)] for g in range(2)]
    swr = A()
    st = A(2, 2)
    XR = [A(40, 4), A(40, 4)]
    WR = A(40, 4)
    T = A(4, 4)
    nv_aux = A.n
    sONE = 40
    KEYS = 2048
    p(f's_mov_b32 s{sONE}, {ONES}')
    p(f'v_and_b32 v{t0}, 7, v0')
    p(f'v_lshlrev_b32 v{vwo}, 4, v{t0}')
    p(f'v_lshrrev_b32 v{t1}, 3, v0')
    p(f'v_mul_u32_u24 v{vxo}, 1280, v{t1}')
    p(f'v_add_u32 v{vxo}, v{vxo}, v{vwo}')
    p(f's_lshl_b32 s14, s{sMB}, 3')
    p(f's_add_u32 s14, s14, s{sW}')
    p(f's_mul_i32 s41, s14, {16*1280}')
    p(f's_add_u32 s42, s41, {8*1280}')
    for r in range(4): p(f'v_mov_b32 v{T+r}, 0')
    p(f's_lshl_b32 s14, s{sW}, 10')
    p(f'v_add_u32 v{t2}, s14, v{vL16}')
    p(f'v_cmp_gt_u32 vcc, 2560, v{t2}')
    p(f'v_mov_b32 v{t3}, 0x7ffffff0')
    p(f'v_cndmask_b32 v{t2}, v{t3}, v{t2}, vcc')
    p(f'v_lshlrev_b32 v{t3}, 8, v0')
    p('s_waitcnt lgkmcnt(0)')
    srd(p, SX, pX, 2621440)
    srd(p, SWS, pWS, WS_END)
    srd(p, SWR, pWR, 1280)
    srd(p, SDB, pDBG, 256)
    p(f's_cmp_lg_u32 s{sMB}, 0')
    p('s_cbranch_scc1 P1_AUX1')
    p(f's_mul_i32 s14, s{sW}, {3*64*256}')
    p(f's_add_u32 s14, s14, {FLG}')
    for k in range(3):
        p(f'buffer_store_dword v{T}, v{t3}, {S4(SWS)}, s14 offen sc1')
        if k < 2: p(f's_add_u32 s14, s14, {64*256}')
    p('P1_AUX1:')
    p(f's_and_b32 s14, s{sW}, 1')
    p(f's_lshl_b32 m0, s14, 10')
    p(f's_mul_i32 s14, s{sMB}, 2560')
    p(f'buffer_load_dwordx4 v{vL16}, {S4(SWR)}, m0 offen lds')
    p(f's_add_u32 s14, s14, {YACC}')
    p(f'buffer_store_dwordx4 {vr(T,4)}, v{t2}, {S4(SWS)}, s14 offen sc1')
    for g in range(2):
        for c in range(10):
            p(f'buffer_load_dwordx4 {vr(XR[g]+4*c,4)}, v{vxo}, {S4(SX)}, s{41+g} offen offset:{128*c}')
        if g == 0:
            p('s_waitcnt vmcnt(10)')
            p('s_barrier')
            for c in range(10): p(f'ds_read_b128 {vr(WR+4*c,4)}, v{vwo} offset:{128*c}')
            if fused:
                p(f's_lshl_b32 s14, s{sMB}, 3')
                p(f's_add_u32 s14, s14, s{sW}')
                p('s_cmp_lg_u32 s14, 0')
                p('s_cbranch_scc1 P1_AUX2')
                set_flag(p, SDB, '0', t0, 128)
                p('P1_AUX2:')
    for g in range(2):
        for x in sm[g]: p(f'v_mov_b32 v{x}, 0')
    p(f'v_mov_b32 v{swr}, 0')
    p('; MARK 3')
    p('s_waitcnt lgkmcnt(0)')
    for r in range(40): p(f'v_dot2c_f32_bf16 v{swr}, s{sONE}, v{WR+r}')
    for g in range(2):
        p(f's_waitcnt vmcnt({10 - 10*g})')
        for r in range(40):
            p(f'v_dot2c_f32_bf16 v{sm[g][0]}, s{sONE}, v{XR[g]+r}')
            p(f'v_dot2c_f32_bf16 v{sm[g][1]}, v{XR[g]+r}, v{XR[g]+r}')
            p(f'v_dot2c_f32_bf16 v{sm[g][2]}, v{WR+r}, v{XR[g]+r}')
    p('; MARK 4')
    allv = sm[0] + sm[1] + [swr]
    for mode in ('quad_perm:[1,0,3,2]', 'quad_perm:[2,3,0,1]', 'row_half_mirror'):
        for x in allv:
            p(f'v_add_f32_dpp v{x}, v{x}, v{x} {mode} row_mask:0xf bank_mask:0xf')
    for g in range(2):
        ln_stats(p, sm[g][0], sm[g][1], st, st+1, t0, t1)
        p(f's_lshl_b32 s14, s{sMB}, 7')
        p(f's_lshl_b32 s15, s{sW}, 4')
        p(f's_add_u32 s14, s14, s15')
        p(f's_add_u32 s14, s14, {8*g}')
        p(f'v_lshrrev_b32 v{t2}, 3, v0')
        p(f'v_add_u32 v{t2}, s14, v{t2}')
        p(f'v_lshlrev_b32 v{t3}, 3, v{t2}')
        p(f's_mov_b32 s16, {STATS}')
        p('s_mov_b32 exec_lo, 0x01010101')
        p('s_mov_b32 exec_hi, 0x01010101')
        p(f'buffer_store_dwordx2 {vr(st,2)}, v{t3}, {S4(SWS)}, s16 offen sc1')
        p('s_mov_b64 exec, -1')
        p(f'v_fma_f32 v{t0}, -v{st}, v{swr}, v{sm[g][2]}')
        p(f'v_mul_f32 v{t0}, v{t0}, v{st+1}')
        p(f'v_cvt_pk_bf16_f32 v{t0}, v{t0}, v{t0}')
        p(f'v_ashrrev_i32 v{t1}, 31, v{t0}')
        p(f'v_or_b32 v{t1}, 0x80000000, v{t1}')
        p(f'v_xor_b32 v{t0}, v{t0}, v{t1}')
        p(f'v_and_b32 v{t0}, 0xffff0000, v{t0}')
        p(f'v_sub_u32 v{t1}, 0xffff, v{t2}')
        p(f'v_or_b32 v{t0}, v{t0}, v{t1}')
        p(f'v_and_b32 v{t1}, 127, v{t2}')
        p(f'v_lshlrev_b32 v{t1}, 2, v{t1}')
        p(f'ds_write_b32 v{t1}, v{t0} offset:{KEYS}')
    p('s_waitcnt vmcnt(0) lgkmcnt(0)')
    p('s_barrier')
    p('; MARK 5')
    p(f's_cmp_lg_u32 s{sW}, 7')
    p('s_cbranch_scc1 P1_AUX3')
    p(f'v_lshlrev_b32 v{t0}, 3, v0')
    p(f'ds_read_b64 {vr(st,2)}, v{t0} offset:{KEYS}')
    p('s_waitcnt lgkmcnt(0)')
    for rnd in range(2):
        p(f'v_max_u32 v{t1}, v{st}, v{st+1}')
        wave_max_u32(p, t1, t0, 48 + rnd, 44)
        if rnd == 0:
            for k in range(2):
                p(f'v_cmp_ne_u32 vcc, s48, v{st+k}')
                p(f'v_cndmask_b32 v{st+k}, 0, v{st+k}, vcc')
    p(f'v_mov_b32 v{st}, s48')
    p(f'v_mov_b32 v{st+1}, s49')
    p(f's_lshl_b32 s14, s{sMB}, 3')
    p(f's_add_u32 s14, s14, {CAND}')
    p('s_mov_b64 exec, 1')
    p(f'buffer_store_dwordx2 {vr(st,2)}, off, {S4(SWS)}, s14 sc1')
    p('s_mov_b64 exec, -1')
    if fused:
        p('s_waitcnt vmcnt(0)')
        p(f's_lshl_b32 s14, s{sMB}, 2')
        set_flag(p, SDB, 's14', t0)
    p('P1_AUX3:')
    p('; MARK 6')
    if fused:
        p(f's_cmp_lt_u32 s{sW}, 4')
        p('s_cbranch_scc1 P2_COMP')
        p(f's_cmp_lg_u32 s{sW}, 4')
        p('s_cbranch_scc1 P2_HELP')
        p('v_mov_b32 v2, 128')
        poll(p, [(3, 2, SDB, 0)], 14)
        p('s_branch P2_HELP')
    else:
        p('s_endpgm')
    return max(nv_comp, nv_aux)
```

```python
from mcommon import *

TAIL = 73728
M_G = 0; M_U = H1; M_D = 0
M_X = 10240; M_ONE = H1 + 10240; M_H = M_ONE + 1280
SCR = 53248
FLAG = H1 + 69632
P3_TR = 53248; P3_UP = P3_TR + 4 * 5376

def phase23(p, fused, opt=()):
    UN = 2
    sH, sJ, sQB, sHF, sIT, sEV, sMODE, sFB, sRB, sCB = 20, 21, 22, 23, 24, 25, 26, 27, 28, 29
    sVM = 30
    SKV, SA = 32, 36
    sK1, sK2, sI0, sI1 = 40, 41, 42, 43
    sST = 44
    sKT, sQ0, sQ1, sQT = 48, 49, 50, 51
    def ids():
        p('s_and_b32 s16, s2, 7')
        p('s_lshl_b32 s17, s16, 2')
        p('s_lshr_b32 s18, s2, 3')
        p('s_and_b32 s19, s18, 3')
        p(f's_add_u32 s{sH}, s17, s19')
        p(f's_lshr_b32 s{sJ}, s2, 5')
        p(f's_lshr_b32 s17, s{sH}, 1')
        p(f's_lshl_b32 s17, s17, 15')
        p(f's_and_b32 s19, s{sH}, 1')
        p(f's_lshl_b32 s19, s19, 3')
        p(f's_add_u32 s{sQT}, s17, s19')
        p(f's_add_u32 s{sKT}, s{sQT}, {KT}')
        p('s_and_b32 s17, s2, 3')
        p('s_lshl_b32 s17, s17, 3')
        p('s_and_b32 s19, s18, 7')
        p(f's_add_u32 s{sRB}, s17, s19')
        p('s_and_b32 s17, s2, 4')
        p('s_lshr_b32 s19, s18, 3')
        p(f's_add_u32 s{sCB}, s17, s19')
    def kv_srd():
        p(f's_mul_i32 s17, s{sH}, 147456')
        p(f's_add_u32 s17, s17, {KVM}')
        p(f's_add_u32 s{SKV}, s{pWS}, s17')
        p(f's_addc_u32 s{SKV+1}, s{pWS+1}, 0')
        p(f's_mov_b32 s{SKV+2}, 147456')
        p(f's_mov_b32 s{SKV+3}, 0x00020000')
    if not fused:
        p(f's_cmp_ge_u32 s{sW}, 4')
        p('s_cbranch_scc1 P2_HELP')
    A = Alloc(2)
    t0, t1, t2, t3 = A(), A(), A(), A()
    aK16, aK4, aV, vso, vso2, vq4 = A(), A(), A(), A(), A(), A()
    Q16 = [A(4, 4) for _ in range(4)]; Q4 = [A(2, 2) for _ in range(4)]
    C = [A(16, 4) for _ in range(4)]; S = [A(16, 4), A(16, 4)]; O = [A(16, 4) for _ in range(4)]
    P = [A(8, 4), A(8, 4)]
    K16 = [A(4, 4), A(4, 4)]; K4 = [A(2, 2), A(2, 2)]
    V = [A(8, 4), A(8, 4)]
    mx = [A() for _ in range(4)]
    nv = A.n
    p('P2_COMP:')
    ids()
    p(f's_and_b32 s{sQB}, s{sW}, 1')
    p(f's_lshr_b32 s{sHF}, s{sW}, 1')
    p(f's_lshl_b32 s18, s{sJ}, 1')
    p(f's_add_u32 s18, s18, s{sQB}')
    p(f's_lshl_b32 s19, s18, 12')
    p(f's_lshl_b32 s17, s{sH}, 16')
    p(f's_add_u32 s{sQ0}, s17, s19')
    if QM: p(f's_add_u32 s{sQ0}, s{sQ0}, {QM}')
    p(f's_lshl_b32 s19, s18, 11')
    p(f's_add_u32 s{sQ1}, s{sQT}, s19')
    p(f's_add_u32 s{sQ1}, s{sQ1}, {QT}')
    p(f's_mov_b32 s{sMODE}, 0')
    p(f's_mov_b32 s{sVM}, 0x000fffff')
    p(f's_mov_b32 s{sVM+1}, 0x000fffff')
    def lds_addr():
        p(f's_mul_i32 s16, s{sHF}, {H1}')
        p(f'v_and_b32 v{t0}, 31, v0')
        p(f'v_lshrrev_b32 v{t2}, 5, v0')
        p(f'v_add_u32 v{aK16}, s16, v{vL16}')
        p(f's_add_u32 s17, s16, {TAIL}')
        p(f'v_lshl_add_u32 v{aK4}, v{t0}, 3, s17')
        p(f'v_mul_u32_u24 v{aV}, 320, v{t2}')
        p(f'v_lshl_add_u32 v{aV}, v{t0}, 4, v{aV}')
        p(f's_add_u32 s17, s16, 1024')
        p(f'v_add_u32 v{aV}, s17, v{aV}')
    def first_loads():
        p(f'buffer_load_dwordx4 {vr(K16[0],4)}, v{vL16}, {S4(SKV)}, 0 offen sc1')
        p(f'buffer_load_dwordx2 {vr(K4[0],2)}, v{t3}, {S4(SWS)}, s{sKT} offen sc1')
        for a in range(4):
            p(f'buffer_load_dwordx4 {vr(Q16[a],4)}, v{vL16}, {S4(SWS)}, s{sQ0} offen offset:{1024*a} sc1')
            p(f'buffer_load_dwordx2 {vr(Q4[a],2)}, v{vq4}, {S4(SWS)}, s{sQ1} offen offset:{512*a} sc1')
    lds_addr()
    p(f'v_lshlrev_b32 v{t3}, 4, v{t0}')
    p(f'v_lshl_add_u32 v{vq4}, v{t2}, 30, v{t3}')
    if not fused:
        p('s_waitcnt lgkmcnt(0)')
        srd(p, SWS, pWS, WS_END)
        kv_srd()
        first_loads()
    else:
        kv_srd()
    p(f's_lshl_b32 s16, s{sJ}, 2')
    p(f's_add_u32 s16, s16, s{sHF}')
    p(f's_lshl_b32 s17, s{sQB}, 1')
    p(f's_add_u32 s52, s16, s17')
    p(f's_lshl_b32 s16, s52, 16')
    p(f's_lshl_b32 s17, s{sH}, 9')
    p(f's_add_u32 s16, s16, s17')
    p(f's_add_u32 s16, s16, {OM}')
    p(f'v_bfe_u32 v{t0}, v0, 4, 1')
    p(f'v_and_b32 v{t1}, 15, v0')
    p(f'v_lshlrev_b32 v{vso}, 14, v{t0}')
    p(f'v_lshl_add_u32 v{vso}, v{t1}, 4, v{vso}')
    p(f'v_lshl_add_u32 v{vso}, v{t2}, 8, v{vso}')
    p(f'v_add_u32 v{vso}, s16, v{vso}')
    p(f's_lshl_b32 s16, s52, 14')
    p(f's_lshl_b32 s17, s{sH}, 7')
    p(f's_add_u32 s16, s16, s17')
    p(f's_add_u32 s16, s16, {OT}')
    p(f'v_lshlrev_b32 v{vso2}, 12, v{t0}')
    p(f'v_lshl_add_u32 v{vso2}, v{t1}, 3, v{vso2}')
    p(f'v_lshl_add_u32 v{vso2}, v{t2}, 30, v{vso2}')
    p(f'v_add_u32 v{vso2}, s16, v{vso2}')
    p(f'v_and_b32 v{t0}, 27, v0')
    p(f'v_cmp_eq_u32 vcc, 24, v{t0}')
    p(f'v_mov_b32 v{t1}, {ONES}')
    p(f'v_cndmask_b32 v{V[0]}, 0, v{t1}, vcc')
    p(f'v_cndmask_b32 v{V[0]+1}, 0, v{t1}, vcc')
    for r in range(2, 16, 2): p(f'v_pk_mov_b32 {vr(V[0]+r,2)}, {vr(V[0],2)}, {vr(V[0],2)}')
    def zero_o():
        p(f'v_mov_b32 v{O[0]}, 0')
        p(f'v_mov_b32 v{O[0]+1}, 0')
        for r in range(2, 64, 2): p(f'v_pk_mov_b32 {vr(O[0]+r,2)}, {vr(O[0],2)}, {vr(O[0],2)}')
        for r in range(0, 8, 2): p(f'v_pk_mov_b32 {vr(P[1]+r,2)}, {vr(O[0],2)}, {vr(O[0],2)}')
    zero_o()
    if fused:
        p('; MARK 9')
        p('s_barrier')
        first_loads()
    def qk(x, sb, kb, c):
        return [f'v_mfma_f32_32x32x16_bf16 {vr(sb,16)}, {vr(K16[kb],4)}, {vr(Q16[x],4)}, {c}',
                f'v_mfma_f32_32x32x8bf16_1k {vr(sb,16)}, {vr(K4[kb],2)}, {vr(Q4[x],2)}, {vr(sb,16)}']
    def pv(x, pb, vb):
        return [f'v_mfma_f32_32x32x16_bf16 {vr(O[x],16)}, {vr(V[vb]+4*f,4)}, {vr(P[pb]+4*f,4)}, {vr(O[x],16)}' for f in range(2)]
    def tilemax(s, dst, first):
        if first:
            p(f'v_max3_f32 v{dst}, v{s}, v{s+1}, v{s+2}')
            for k in range(3, 15, 2): p(f'v_max3_f32 v{dst}, v{dst}, v{s+k}, v{s+k+1}')
            p(f'v_max_f32 v{dst}, v{dst}, v{s+15}')
        else:
            for k in range(0, 16, 2): p(f'v_max3_f32 v{dst}, v{dst}, v{s+k}, v{s+k+1}')
    def set_c():
        tt = [t0, t1, t2, t3]
        for x in range(4): p(f'v_mov_b32 v{tt[x]}, v{mx[x]}')
        for x in range(4): p(f'v_permlane32_swap_b32 v{mx[x]}, v{tt[x]}')
        for x in range(4): p(f'v_max_f32 v{mx[x]}, v{mx[x]}, v{tt[x]}')
        for x in range(4): p(f'v_xor_b32 v{C[x]}, 0x80000000, v{mx[x]}')
        for x in range(4): p(f'v_xor_b32 v{C[x]+1}, 0x80000000, v{mx[x]}')
        for k in range(1, 8):
            for x in range(4):
                p(f'v_pk_mov_b32 {vr(C[x]+2*k,2)}, {vr(C[x],2)}, {vr(C[x],2)}')
    def maxstep(first):
        q = [qk(x, C[x], 0, '0') for x in range(4)]
        for x in range(4):
            if first: p(f's_waitcnt vmcnt({6-2*x})')
            p(q[x][0]); p(q[x][1])
        for x in range(4): tilemax(C[x], mx[x], first)
    p('; MARK 10')
    maxstep(True)
    set_c()
    p('P2_MAIN:')
    p('s_barrier')
    p('; MARK 11')
    def rdK(kb, t):
        return [f'ds_read_b128 {vr(K16[kb],4)}, v{aK16} offset:{t*2304}', f'ds_read_b64 {vr(K4[kb],2)}, v{aK4} offset:{t*256}']
    def rdV(vb, t):
        return [f's_mov_b64 exec, s[{sVM}:{sVM+1}]',
                f'ds_read_b128 {vr(V[vb],4)}, v{aV} offset:{t*2304}', f'ds_read_b128 {vr(V[vb]+4,4)}, v{aV} offset:{t*2304+640}',
                's_mov_b64 exec, -1']
    for l in rdK(0, 0) + rdV(0, 0): p(l)
    p(f's_mov_b32 s{sIT}, 0')
    p(f's_mov_b32 s{sEV}, 1')
    p('s_waitcnt lgkmcnt(2)')
    for l in qk(0, S[0], 0, vr(C[0], 16)): p(l)
    p('s_nop 8')
    def step(sb, mf, ex):
        s = S[sb]; pp = P[sb]
        e = lambda k: [f'v_exp_f32 v{s+4*k+i}, v{s+4*k+i}' for i in range(4)]
        c = lambda k: [f'v_cvt_pk_bf16_f32 v{pp+2*k+i}, v{s+4*k+2*i}, v{s+4*k+2*i+1}' for i in range(2)]
        L = []
        L += mf[0:1] + ex[0] + e(0)
        L += mf[1:2] + ex[1] + c(0) + e(1)
        L += mf[2:3] + ex[2] + c(1) + e(2)
        L += mf[3:4] + ex[3] + c(2) + e(3) + c(3)
        for l in L: p(l)
    def body(last):
        for t in range(UN):
            b = t & 1
            fin = last and t == UN - 1
            for x in range(4):
                ex = [[], [], [], []]
                nx = (x + 1) & 3
                if fin and x == 3: mq = ['', '']
                else: mq = qk(nx, S[(x + 1) & 1], b if x < 3 else 1 - b, vr(C[nx], 16))
                mp = pv((x - 1) & 3, (x - 1) & 1, b if x > 0 else 1 - b)
                if not fin:
                    if x == 0: ex[0] = rdK(1 - b, t + 1)
                    if x == 1: ex[0] = rdV(1 - b, t + 1)
                if x == 0: ex[3] = ['s_waitcnt lgkmcnt(2)' if not fin else 's_waitcnt lgkmcnt(0)']
                if x == 2 and not fin: ex[3] = ['s_waitcnt lgkmcnt(2)']
                if not last and t == UN - 1 and x == 3:
                    ex[0] = [f's_add_u32 s{sIT}, s{sIT}, 1']
                    ex[2] = [f's_cmp_lg_u32 s{sIT}, s{sEV}']
                if not last and t == UN - 1 and x == 2:
                    ex[1] = [f'v_add_u32 v{a}, {UN*st}, v{a}' for a, st in ((aK16, 2304), (aK4, 256), (aV, 2304))]
                step(x & 1, mq + mp, ex)
            if fin:
                for l in pv(3, 1, b): p(l)
    NIT = 32 // UN
    p('.p2align 6')
    p('P2_LOOP:')
    body(False)
    p('s_cbranch_scc1 P2_LOOP')
    p(f's_cmp_eq_u32 s{sIT}, {NIT-1}')
    p('s_cbranch_scc1 P2_LAST')
    p('s_barrier')
    p(f's_cmp_eq_u32 s{sIT}, 3')
    p(f's_cselect_b32 s{sEV}, 12, {NIT-1}')
    p(f's_cmp_eq_u32 s{sIT}, 1')
    p(f's_cselect_b32 s{sEV}, 3, s{sEV}')
    p('s_branch P2_LOOP')
    p('.p2align 6')
    p('P2_LAST:')
    body(True)
    p('; MARK 12')
    p(f's_lshl_b32 s16, s{sQB}, 13')
    p(f's_add_u32 s16, s16, {SCR}')
    p(f's_mul_i32 s17, s{sHF}, {H1}')
    p(f's_add_u32 s17, s17, s16')
    p(f'v_add_u32 v{t0}, s17, v{vL16}')
    p(f's_xor_b32 s17, s{sHF}, 1')
    p(f's_mul_i32 s17, s17, {H1}')
    p(f's_add_u32 s17, s17, s16')
    p(f'v_add_u32 v{t1}, s17, v{vL16}')
    p('s_barrier')
    p(f's_cmp_eq_u32 s{sHF}, 0')
    p('s_cbranch_scc1 P2_SEND1')
    for k in range(8): p(f'ds_write_b128 v{t0}, {vr(O[0]+4*k,4)} offset:{1024*k}')
    for x in range(2):
        for r in range(0, 14, 2): p(f'v_pk_mov_b32 {vr(O[x]+r,2)}, {vr(O[2+x]+r,2)}, {vr(O[2+x]+r,2)} op_sel:[0,1]')
    p('s_branch P2_SENT')
    p('P2_SEND1:')
    for k in range(8): p(f'ds_write_b128 v{t0}, {vr(O[2]+4*k,4)} offset:{1024*k}')
    p('P2_SENT:')
    p('s_waitcnt lgkmcnt(0)')
    p('s_barrier')
    for k in range(8): p(f'ds_read_b128 {vr(S[0]+4*k,4)}, v{t1} offset:{1024*k}')
    p(f's_mov_b32 s16, 32768')
    p(f's_mov_b32 s17, 8192')
    for x in range(2):
        p(f's_waitcnt lgkmcnt({4-4*x})')
        o = O[x]
        for r in range(0, 14, 2): p(f'v_pk_add_f32 {vr(o+r,2)}, {vr(o+r,2)}, {vr(S[x]+r,2)}')
        p(f'v_rcp_f32 v{o+14}, v{o+12}')
        for r in range(0, 12, 2): p(f'v_pk_mul_f32 {vr(S[x]+r,2)}, {vr(o+r,2)}, {vr(o+14,2)} op_sel_hi:[1,0]')
        for k in range(6): p(f'v_cvt_pk_bf16_f32 v{P[x]+k}, v{S[x]+2*k}, v{S[x]+2*k+1}')
        p(f'buffer_store_dwordx4 {vr(P[x],4)}, v{vso}, {S4(SWS)}, {"0" if x == 0 else "s16"} offen sc1')
        p(f'buffer_store_dwordx2 {vr(P[x]+4,2)}, v{vso2}, {S4(SWS)}, {"0" if x == 0 else "s17"} offen sc1')
    p('; MARK 13')
    p(f's_cmp_lg_u32 s{sMODE}, 0')
    p('s_cbranch_scc1 P2_REWO')
    p(f'v_add_f32 v{t2}, abs(v{O[0]}), abs(v{O[0]+1})')
    p(f'v_add_f32 v{t3}, abs(v{O[1]}), abs(v{O[1]+1})')
    for r in range(2, 12):
        p(f'v_add_f32 v{t2}, v{t2}, abs(v{O[0]+r})')
        p(f'v_add_f32 v{t3}, v{t3}, abs(v{O[1]+r})')
    p(f's_mov_b32 s16, {hex(f2u(2.0**64))}')
    p(f's_mov_b32 s17, {hex(f2u(2.0**120))}')
    p(f'v_add_f32 v{t2}, v{t2}, v{t3}')
    p(f'v_add_f32 v{t3}, v{O[0]+12}, v{O[1]+12}')
    p(f'v_cmp_nle_f32 s[18:19], v{t3}, s16')
    p(f'v_cmp_nle_f32 vcc, v{t2}, s17')
    p('s_or_b64 s[18:19], s[18:19], vcc')
    p('s_cselect_b32 s16, 1, 0')
    if 'force_exact' in opt: p('s_mov_b32 s16, 1')
    p(f's_lshl_b32 s17, s{sW}, 2')
    p(f's_add_u32 s17, s17, {FLAG}')
    p(f'v_mov_b32 v{t0}, s16')
    p(f'v_mov_b32 v{t1}, s17')
    p(f'ds_write_b32 v{t1}, v{t0}')
    p(f'v_mov_b32 v{t1}, {FLAG}')
    p('s_waitcnt lgkmcnt(0)')
    p('s_barrier')
    p(f'ds_read_b128 {vr(S[0],4)}, v{t1}')
    p('s_waitcnt lgkmcnt(0)')
    p(f'v_or3_b32 v{t0}, v{S[0]}, v{S[0]+1}, v{S[0]+2}')
    p(f'v_or_b32 v{t0}, v{t0}, v{S[0]+3}')
    p(f'v_readfirstlane_b32 s16, v{t0}')
    p('s_cmp_lg_u32 s16, 0')
    p('s_cbranch_scc1 P2_EXACT')

    p('P3:')
    A = Alloc(2)
    t0, t1, t2, t3 = A(), A(), A(), A()
    vrow = [A(), A(), A()]; vg = [A(), A(), A()]; vl = [A(), A(), A()]; vu = [A(), A(), A()]
    aM = [A(), A()]; aT = [A(), A()]; vot, vtr, vfl, vcd = A(), A(), A(), A()
    ST = [A(2, 2) for _ in range(3)]
    XT = [A(4, 4) for _ in range(3)]
    R = [A(8, 4) for _ in range(3)]
    OF = A(80, 4)
    acc = A(20, 4)
    WF = [A(20, 4), A(20, 4)]
    Y = A(32, 4)
    nv = max(nv, A.n)
    sRT, sAF = 22, 23
    SX, SO = 32, 36
    p(f's_lshl_b32 s16, s52, 5')
    p(f's_add_u32 s16, s16, s{sH}')
    p(f's_lshl_b32 s16, s16, 8')
    p(f's_add_u32 s53, s16, {F2}')
    p(f's_lshl_b32 s{sRT}, s{sRB}, 2')
    p(f's_add_u32 s{sRT}, s{sRT}, s{sW}')
    p(f's_lshl_b32 s12, s{sRT}, 4')
    p(f's_mul_i32 s13, s12, 1280')
    p(f's_mul_i32 s15, s{sCB}, 160')
    p(f's_add_u32 s13, s13, s15')
    p(f's_lshl_b32 s12, s12, 3')
    p(f's_add_u32 s12, s12, {STATS}')
    p(f's_mul_i32 s14, s{sW}, 5376')
    p(f's_add_u32 s14, s14, {P3_TR}')
    srd(p, SX, pX, 2621440)
    srd(p, SO, pOUT, 2621440)
    vs = [R[0], R[0]+1, R[0]+2]
    for r in range(3):
        p(f'v_add_u32 v{t0}, {64*r}, v0')
        p(f'v_mul_u32_u24 v{t1}, 205, v{t0}')
        p(f'v_lshrrev_b32 v{vrow[r]}, 11, v{t1}')
        p(f'v_mul_u32_u24 v{t1}, 10, v{vrow[r]}')
        p(f'v_sub_u32 v{t0}, v{t0}, v{t1}')
        p(f'v_lshlrev_b32 v{vu[r]}, 5, v{t0}')
        p(f'v_mul_u32_u24 v{t1}, 1280, v{vrow[r]}')
        p(f'v_lshl_add_u32 v{vg[r]}, v{t0}, 4, v{t1}')
        p(f'v_mul_u32_u24 v{t1}, 336, v{vrow[r]}')
        p(f'v_add3_u32 v{vl[r]}, v{t1}, v{vu[r]}, s14')
        p(f'v_lshlrev_b32 v{vs[r]}, 3, v{vrow[r]}')
        if r == 2:
            p(f'v_lshrrev_b32 v{t1}, 5, v0')
            p(f'v_lshlrev_b32 v{t1}, 30, v{t1}')
            p(f'v_add_u32 v{vg[r]}, v{vg[r]}, v{t1}')
            p(f'v_add_u32 v{vs[r]}, v{vs[r]}, v{t1}')
            p(f'v_lshl_add_u32 v{vcd}, v0, 2, v{t1}')
    p('s_waitcnt vmcnt(0)')
    set_flag(p, SWS, 's53', t0)
    p('; MARK 14')
    p(f's_mov_b32 s16, {CAND}')
    p(f'buffer_load_dword v{vcd}, v{vcd}, {S4(SWS)}, s16 offen sc1')
    for r in range(3):
        p(f'buffer_load_dwordx4 {vr(XT[r],4)}, v{vg[r]}, {S4(SX)}, s13 offen')
        p(f'buffer_load_dwordx2 {vr(ST[r],2)}, v{vs[r]}, {S4(SWS)}, s12 offen sc1')
    p(f'v_lshrrev_b32 v{t0}, 4, v0')
    p(f'v_bfe_u32 v{t1}, v0, 2, 2')
    p(f'v_and_b32 v{t2}, 3, v0')
    p(f'v_lshlrev_b32 v{t2}, 3, v{t2}')
    p(f'v_mad_u32_u24 v{t3}, v{t0}, 40, v{t1}')
    p(f'v_add_u32 v{t3}, 16, v{t3}')
    p(f'v_mul_u32_u24 v{t3}, 160, v{t3}')
    p(f'v_add_u32 v{aT[0]}, v{t3}, v{t2}')
    p(f'v_add_u32 v{aT[1]}, {H1}, v{aT[0]}')
    p(f'v_lshrrev_b32 v{t3}, 1, v{t0}')
    p(f'v_mad_u32_u24 v{t1}, v{t3}, 20, v{t1}')
    p(f'v_and_b32 v{t3}, 1, v{t0}')
    p(f'v_lshl_add_u32 v{t1}, v{t3}, 2, v{t1}')
    p(f'v_mul_u32_u24 v{t1}, 160, v{t1}')
    p(f'v_add_u32 v{aM[0]}, v{t1}, v{t2}')
    p(f'v_add_u32 v{aM[1]}, {H1}, v{aM[0]}')
    p(f'v_and_b32 v{t1}, 15, v0')
    p(f'v_lshlrev_b32 v{vot}, 8, v{t0}')
    p(f'v_lshl_add_u32 v{vot}, v{t1}, 3, v{vot}')
    p(f'v_mul_u32_u24 v{vtr}, 336, v{t1}')
    p(f'v_lshl_add_u32 v{vtr}, v{t0}, 4, v{vtr}')
    p(f'v_add_u32 v{vtr}, s14, v{vtr}')
    p(f'v_and_b32 v{vfl}, 31, v0')
    p(f'v_lshlrev_b32 v{vfl}, 8, v{vfl}')
    p(f's_lshl_b32 s10, s{sRT}, 14')
    p(f's_add_u32 s10, s10, {OM}')
    p(f's_lshl_b32 s11, s{sRT}, 12')
    p(f's_add_u32 s11, s11, {OT}')
    p(f's_lshl_b32 s9, s{sRB}, 13')
    p(f's_add_u32 s9, s9, {F2}')
    p('s_waitcnt vmcnt(6)')
    top2_vec(p, vcd, t0, sK1, sK2, 16)
    p(f's_mov_b32 s{sAF}, 0')
    for tk in range(2):
        p(f's_andn2_b32 s{sI0+tk}, 0xffff, s{sK1+tk}')
        p(f's_lshr_b32 s16, s{sI0+tk}, 4')
        p(f's_cmp_eq_u32 s16, s{sRT}')
        p(f's_cselect_b32 s16, {1+tk}, 0')
        p(f's_or_b32 s{sAF}, s{sAF}, s16')
    def residual(r):
        x = XT[r]; st = ST[r]; rr = R[r]; df = WF[1]
        for k in range(4):
            p(f'v_lshlrev_b32 v{rr+2*k}, 16, v{x+k}')
            p(f'v_and_b32 v{rr+2*k+1}, 0xffff0000, v{x+k}')
        for k in range(4): p(f'v_pk_add_f32 {vr(df+2*k,2)}, {vr(rr+2*k,2)}, {vr(st,2)} op_sel_hi:[1,0] neg_lo:[0,1] neg_hi:[0,1]')
        for k in range(4): p(f'v_cvt_pk_bf16_f32 v{x+k}, v{df+2*k}, v{df+2*k+1}')
        for k in range(4):
            p(f'v_lshlrev_b32 v{df+2*k}, 16, v{x+k}')
            p(f'v_and_b32 v{df+2*k+1}, 0xffff0000, v{x+k}')
        for k in range(4): p(f'v_pk_mul_f32 {vr(df+2*k,2)}, {vr(df+2*k,2)}, {vr(st,2)} op_sel:[0,1] op_sel_hi:[1,1]')
        for k in range(4): p(f'v_cvt_pk_bf16_f32 v{x+k}, v{df+2*k}, v{df+2*k+1}')
        for k in range(4):
            p(f'v_lshlrev_b32 v{df+2*k}, 16, v{x+k}')
            p(f'v_and_b32 v{df+2*k+1}, 0xffff0000, v{x+k}')
        for k in range(4): p(f'v_pk_add_f32 {vr(rr+2*k,2)}, {vr(rr+2*k,2)}, {vr(df+2*k,2)}')
    p('s_waitcnt vmcnt(0)')
    for r in range(3): residual(r)
    p(f's_cmp_eq_u32 s{sAF}, 0')
    p('s_cbranch_scc1 P3_NOY')
    p(f'v_lshlrev_b32 v{t0}, 8, v0')
    p(f's_mov_b32 s16, {FM}')
    p(f's_mov_b32 s17, {FM + 64*256}')
    p(f's_mov_b32 s18, {FM + 128*256}')
    poll(p, [(t1, t0, SWS, 's16'), (t2, t0, SWS, 's17'), (t3, t0, SWS, 's18')], 19)
    p(f's_mul_i32 s15, s{sW}, 640')
    p(f's_add_u32 s15, s15, {P3_UP}')
    p(f'v_add_u32 v{t2}, s15, v{vL16}')
    p(f'v_cmp_gt_u32 vcc, 20, v0')
    p(f'v_mov_b32 v{t3}, 0x7ffffff0')
    p(f'v_cndmask_b32 v{t3}, v{t3}, v{vL16}, vcc')
    for tk in range(2):
        y = Y
        p(f's_mul_i32 s16, s{sCB}, 320')
        p(f's_add_u32 s16, s16, {YACC + 2560*tk}')
        for rep in range(8):
            p(f'buffer_load_dwordx4 {vr(y+4*rep,4)}, v{t3}, {S4(SWS)}, s16 offen sc1')
            if rep < 7: p('s_add_u32 s16, s16, 5120')
        p(f's_lshr_b32 s16, s{sK1+tk}, 31')
        p(f's_sub_u32 s16, s16, 1')
        p(f's_or_b32 s16, s16, 0x80000000')
        p(f's_xor_b32 s16, s16, s{sK1+tk}')
        p(f's_and_b32 s16, s16, 0xffff0000')
        p(f'v_mov_b32 v{t0}, {hex(f2u(-math.log2(math.e)))}')
        p(f'v_mul_f32 v{t0}, s16, v{t0}')
        p(f'v_exp_f32 v{t0}, v{t0}')
        p(f'v_add_f32 v{t0}, 1.0, v{t0}')
        p(f'v_rcp_f32 v{t0}, v{t0}')
        p(f'v_cvt_pk_bf16_f32 v{t0}, v{t0}, v{t0}')
        p(f'v_and_b32 v{t0}, 0xffff0000, v{t0}')
        p('s_waitcnt vmcnt(0)')
        for rep in range(1, 8):
            for k in range(2):
                p(f'v_pk_add_f32 {vr(y+2*k,2)}, {vr(y+2*k,2)}, {vr(y+4*rep+2*k,2)}')
        for rnd in range(2):
            for k in range(2):
                p(f'v_cvt_pk_bf16_f32 v{y+4+k}, v{y+2*k}, v{y+2*k+1}')
            for k in range(2):
                p(f'v_lshlrev_b32 v{y+2*k}, 16, v{y+4+k}')
                p(f'v_and_b32 v{y+2*k+1}, 0xffff0000, v{y+4+k}')
            if rnd == 0:
                for k in range(4): p(f'v_mul_f32 v{y+k}, v{y+k}, v{t0}')
        p('s_mov_b64 exec, 0xfffff')
        p(f'ds_write_b128 v{t2}, {vr(y,4)} offset:{320*tk}')
        p('s_mov_b64 exec, -1')
        p('s_waitcnt lgkmcnt(0)')
    for tk in range(2):
        p(f's_lshr_b32 s16, s{sI0+tk}, 4')
        p(f's_cmp_eq_u32 s16, s{sRT}')
        p(f's_cselect_b32 s16, s{sI0+tk}, 99')
        p(f's_cselect_b32 s17, 15, -1')
        p(f's_and_b32 s16, s16, s17')
        for r in range(3):
            p(f'v_add_u32 v{t1}, s15, v{vu[r]}')
            p(f'ds_read_b128 {vr(Y,4)}, v{t1} offset:{320*tk}')
            p(f'ds_read_b128 {vr(Y+4,4)}, v{t1} offset:{320*tk+16}')
            p(f'v_cmp_eq_u32 vcc, s16, v{vrow[r]}')
            p(f's_and_saveexec_b64 s[18:19], vcc')
            p('s_waitcnt lgkmcnt(0)')
            for k in range(8): p(f'v_add_f32 v{R[r]+k}, v{R[r]+k}, v{Y+k}')
            p('s_mov_b64 exec, -1')
    p('P3_NOY:')
    def rd(b, s):
        L = []
        for nt in range(5):
            for j in range(2):
                if s < 16: a = aM[s >> 3]; off = (40 * (s & 7) + 8 * j) * 160 + 32 * nt
                else: a = aT[(s - 16) >> 1]; off = (160 * ((s - 16) & 1) + 20 * j) * 160 + 32 * nt
                L.append(f'ds_read_b64_tr_b16 {vr(WF[b]+4*nt+2*j,2)}, v{a} offset:{off}')
        return L
    def ld(s):
        if s < 16:
            L = [f'buffer_load_dwordx4 {vr(OF+4*s,4)}, v{vL16}, {S4(SWS)}, s10 offen offset:{1024*(s&3)} sc1']
            if s & 3 == 3: L.append('s_add_u32 s10, s10, 4096')
            return L
        return [f'buffer_load_dwordx2 {vr(OF+4*s+2*j,2)}, v{vot}, {S4(SWS)}, s11 offen offset:{1024*(s-16)+128*j} sc1' for j in range(2)]
    for l in rd(0, 0): p(l)
    p('; MARK 15')
    poll(p, [(t1, vfl, SWS, 's9')], 19)
    LA = 10
    nld = [1] * 16 + [2] * 4
    for s in range(LA):
        for l in ld(s): p(l)
    for s in range(20):
        b = s & 1
        issued = min(20, s + LA)
        p(f's_waitcnt vmcnt({sum(nld[s+1:issued])}) lgkmcnt(0)')
        nx = rd(1 - b, s + 1) if s < 19 else []
        lx = ld(s + LA) if s + LA < 20 else []
        for nt in range(5):
            p(f'v_mfma_f32_16x16x32_bf16 {vr(acc+4*nt,4)}, {vr(WF[b]+4*nt,4)}, {vr(OF+4*s,4)}, {vr(acc+4*nt,4) if s else 0}')
            for l in nx[2*nt:2*nt+2]: p(l)
        for l in lx: p(l)
    for nt in range(5):
        p(f'ds_write_b128 v{vtr}, {vr(acc+4*nt,4)} offset:{64*nt}')
    AT = Y
    p('s_waitcnt lgkmcnt(0)')
    for r in range(3):
        p(f'ds_read_b128 {vr(AT+8*r,4)}, v{vl[r]}')
        p(f'ds_read_b128 {vr(AT+8*r+4,4)}, v{vl[r]} offset:16')
    for r in range(3):
        p(f's_waitcnt lgkmcnt({4-2*r})')
        a = AT + 8*r
        for k in range(4):
            p(f'v_pk_add_f32 {vr(a+2*k,2)}, {vr(a+2*k,2)}, {vr(R[r]+2*k,2)}')
        for k in range(4):
            p(f'v_cvt_pk_bf16_f32 v{XT[r]+k}, v{a+2*k}, v{a+2*k+1}')
        p(f'buffer_store_dwordx4 {vr(XT[r],4)}, v{vg[r]}, {S4(SO)}, s13 offen')
    p('s_endpgm')

    t0, t1, t2, t3 = 2, 3, 4, 5
    def tail_addr(d):
        p(f'v_lshrrev_b32 v{d}, 1, v0')
        p(f'v_lshlrev_b32 v{d}, 4, v{d}')
        p(f'v_and_b32 v{t1}, 1, v0')
        p(f'v_lshl_add_u32 v{d}, v{t1}, 2, v{d}')
    p('P2_EXACT:')
    p(f's_mov_b32 s{sMODE}, 1')
    p('s_waitcnt vmcnt(0)')
    p('s_barrier')
    tail_addr(t0)
    p(f's_mov_b32 s{sIT}, 0')
    p('P2_RELOAD:')
    p(f's_lshl_b32 s16, s{sIT}, 2')
    p(f's_add_u32 s16, s16, s{sW}')
    p(f's_cmp_ge_u32 s16, 72')
    p(f's_cselect_b32 s17, {H1 - TAIL}, 0')
    p(f's_lshl_b32 s16, s16, 10')
    p(f's_add_u32 m0, s16, s17')
    p(f's_add_u32 s{sIT}, s{sIT}, 1')
    p(f'buffer_load_dwordx4 v{vL16}, {S4(SKV)}, s16 offen sc1 lds')
    p(f's_cmp_lt_u32 s{sIT}, 36')
    p('s_cbranch_scc1 P2_RELOAD')
    p(f's_mov_b32 s{sIT}, 0')
    p('P2_RELOAD2:')
    p(f's_lshl_b32 s16, s{sIT}, 2')
    p(f's_add_u32 s16, s16, s{sW}')
    p(f's_cmp_ge_u32 s16, 32')
    p(f's_cselect_b32 s17, {TAIL}, 0')
    p(f's_lshl_b32 s18, s16, 8')
    p(f's_add_u32 s18, s18, s17')
    p(f's_add_u32 m0, s18, {TAIL}')
    p(f's_lshl_b32 s16, s16, 9')
    p(f's_add_u32 s16, s16, s{sKT}')
    p(f's_add_u32 s{sIT}, s{sIT}, 1')
    p(f'buffer_load_dword v{t0}, {S4(SWS)}, s16 offen sc1 lds')
    p(f's_cmp_lt_u32 s{sIT}, 16')
    p('s_cbranch_scc1 P2_RELOAD2')
    p(f'v_and_b32 v{t0}, 31, v0')
    p(f'v_mov_b32 v{aK16}, v{vL16}')
    p(f'v_lshlrev_b32 v{aK4}, 3, v{t0}')
    p(f'v_add_u32 v{aK4}, {TAIL}, v{aK4}')
    for x in range(4): p(f'v_mov_b32 v{mx[x]}, 0xff800000')
    p('s_waitcnt vmcnt(0)')
    p('s_barrier')
    p(f's_mov_b32 s{sIT}, 0')
    p('P2_MAXL:')
    p(f'ds_read_b128 {vr(K16[0],4)}, v{aK16}')
    p(f'ds_read_b64 {vr(K4[0],2)}, v{aK4}')
    p(f's_cmp_eq_u32 s{sIT}, 31')
    p(f's_cselect_b32 s16, {H1 - TAIL}, 0')
    p(f's_cselect_b32 s17, {TAIL}, 0')
    p(f's_add_u32 s16, s16, 2304')
    p(f's_add_u32 s17, s17, 256')
    p(f'v_add_u32 v{aK16}, s16, v{aK16}')
    p(f'v_add_u32 v{aK4}, s17, v{aK4}')
    p('s_waitcnt lgkmcnt(0)')
    maxstep(False)
    p(f's_add_u32 s{sIT}, s{sIT}, 1')
    p(f's_cmp_lt_u32 s{sIT}, 64')
    p('s_cbranch_scc1 P2_MAXL')
    set_c()
    lds_addr()
    zero_o()
    p(f's_mov_b64 exec, s[{sVM}:{sVM+1}]')
    for r in range(8): p(f'v_mov_b32 v{V[1]+r}, 0')
    p('s_mov_b64 exec, -1')
    p('s_branch P2_MAIN')
    WA = 8
    def wo_addr():
        for k in range(5):
            p(f'v_add_u32 v{t0}, {64*k}, v0')
            p(f'v_mul_u32_u24 v{t1}, 205, v{t0}')
            p(f'v_lshrrev_b32 v{t1}, 11, v{t1}')
            p(f'v_mul_u32_u24 v{t2}, {1280 - 160}, v{t1}')
            p(f'v_lshl_add_u32 v{WA+k}, v{t0}, 4, v{t2}')
        srd(p, SA, pWO, 819200)
    p('P2_REWO:')
    p('s_barrier')
    wo_addr()
    p(f's_mov_b32 s{sIT}, s{sW}')
    p('P2_REWO1:')
    p(f's_mul_i32 s16, s{sIT}, 40960')
    p(f's_mul_i32 s17, s{sCB}, 160')
    p(f's_add_u32 s16, s16, s17')
    p(f's_cmp_ge_u32 s{sIT}, 10')
    p(f's_cselect_b32 s17, {H1 - 51200}, 0')
    p(f's_mul_i32 s18, s{sIT}, 5120')
    p(f's_add_u32 s18, s18, s17')
    for k in range(5):
        p(f's_add_u32 m0, s18, {1024*k}')
        p(f'buffer_load_dwordx4 v{WA+k}, {S4(SA)}, s16 offen lds')
    p(f's_add_u32 s{sIT}, s{sIT}, 4')
    p(f's_cmp_lt_u32 s{sIT}, 20')
    p('s_cbranch_scc1 P2_REWO1')
    p('s_waitcnt vmcnt(0)')
    p('s_barrier')
    p('s_branch P3')

    p('P2_HELP:')
    ids()
    vtl = 6
    tail_addr(vtl)
    p(f's_mul_i32 s16, s16, 24')
    p(f's_add_u32 s{sFB}, s16, s18')
    p(f's_cmp_lt_u32 s18, 24')
    p(f's_cselect_b32 s{sFB}, s{sFB}, -1')
    if not fused:
        p('s_waitcnt lgkmcnt(0)')
        srd(p, SWS, pWS, WS_END)
    kv_srd()
    if fused:
        p(f's_cmp_lg_u32 s{sW}, 4')
        p('s_cbranch_scc1 P2_HELP1')
        srd(p, SA, pDBG, 256)
        p(f's_mul_i32 s16, s{sH}, 20')
        p(f's_add_u32 s17, s16, 19')
        p(f's_lshr_b32 s16, s16, 7')
        p(f's_lshr_b32 s17, s17, 7')
        p(f's_sub_u32 s17, s17, s16')
        p(f'v_bfe_u32 v{t0}, v0, 4, 1')
        p(f'v_mul_u32_u24 v{t0}, s17, v{t0}')
        p(f'v_lshrrev_b32 v{t1}, 5, v0')
        p(f'v_mad_u32_u24 v{t0}, v{t1}, 5, v{t0}')
        p(f's_add_u32 s18, s16, 5')
        p(f'v_add_u32 v{t0}, s18, v{t0}')
        p(f'v_and_b32 v{t2}, 15, v0')
        p(f'v_lshl_add_u32 v{t0}, v{t0}, 4, v{t2}')
        p(f'v_lshlrev_b32 v7, 8, v{t0}')
        p(f'v_lshlrev_b32 v9, 2, v{t2}')
        p(f'v_and_b32 v{t0}, 1, v0')
        p(f'v_mul_u32_u24 v{t0}, s17, v{t0}')
        p(f'v_add_u32 v{t0}, s16, v{t0}')
        p(f'v_bfe_u32 v{t1}, v0, 1, 1')
        p(f'v_lshl_add_u32 v{t0}, v{t0}, 4, v{t1}')
        p(f's_lshl_b32 s18, s{sJ}, 1')
        p(f'v_add_u32 v{t0}, s18, v{t0}')
        p(f'v_lshlrev_b32 v8, 8, v{t0}')
        p(f's_mov_b32 s16, {F1}')
        p('s_waitcnt vmcnt(0)')
        p('; MARK 6')
        poll(p, [(t0, 7, SWS, 's16'), (t1, 8, SWS, 's16'), (t2, 9, SA, '0')], 19)
        p('; MARK 7')
        p('P2_HELP1:')
        p('s_barrier')
    sM, sTL, sTG = 52, 53, 54
    p(f's_sub_u32 s16, s{sW}, 4')
    p(f's_lshl_b32 s{sM}, s16, 10')
    p(f's_lshl_b32 s{sTL}, s16, 8')
    p(f's_add_u32 s{sTL}, s{sTL}, {TAIL}')
    p(f's_lshl_b32 s{sTG}, s16, 9')
    p(f's_add_u32 s{sTG}, s{sTG}, s{sKT}')
    def dmaM(r):
        p(f's_add_u32 m0, s{sM}, {4096*r}')
        p(f's_add_u32 s16, s{sM}, {4096*r + TAIL}')
        p(f'buffer_load_dwordx4 v{vL16}, {S4(SKV)}, m0 offen sc1 lds')
        p(f's_add_u32 m0, s{sM}, {4096*r + H1}')
        p(f's_nop 0')
        p(f'buffer_load_dwordx4 v{vL16}, {S4(SKV)}, s16 offen sc1 lds')
    def dmaT(k):
        for hf in range(2):
            p(f's_add_u32 m0, s{sTL}, {1024*k + H1*hf}')
            p(f's_add_u32 s16, s{sTG}, {2048*k + 16384*hf}')
            p(f'buffer_load_dword v{vtl}, {S4(SWS)}, s16 offen sc1 lds')
    dmaM(0); dmaT(0); dmaM(1); dmaM(2)
    p('s_waitcnt vmcnt(2)')
    p('; MARK 8')
    p('s_barrier')
    dmaT(1); dmaM(3); dmaM(4); dmaM(5)
    p('s_waitcnt vmcnt(4)')
    p('s_barrier')
    for r in range(6, 18):
        dmaM(r)
        if r % 2 == 0: dmaT(r // 2 - 1)
    p('s_waitcnt vmcnt(0)')
    p('; MARK 9')
    p('s_barrier')
    p(f's_cmp_eq_u32 s{sW}, 4')
    p('s_cbranch_scc1 P2_FFN')
    wo_addr()
    WB = 16
    NG = 7
    p(f's_sub_u32 s19, s{sW}, 5')
    p(f's_mul_i32 s19, s19, {NG}')
    p(f's_mul_i32 s16, s19, 40960')
    p(f's_mul_i32 s17, s{sCB}, 160')
    p(f's_add_u32 s16, s16, s17')
    for g in range(NG):
        for k in range(5):
            p(f'buffer_load_dwordx4 {vr(WB+20*g+4*k,4)}, v{WA+k}, {S4(SA)}, s16 offen')
        if g < NG - 1: p(f's_add_u32 s16, s16, 40960')
    p('s_waitcnt vmcnt(0)')
    p('; MARK 10')
    p('s_barrier')
    for g in range(NG):
        if g == NG - 1:
            p(f's_cmp_eq_u32 s{sW}, 7')
            p('s_cbranch_scc1 P2_WOX')
        p(f's_cmp_ge_u32 s19, 10')
        p(f's_cselect_b32 s17, {H1 - 51200}, 0')
        p(f's_mul_i32 s18, s19, 5120')
        p(f's_add_u32 s18, s18, s17')
        p(f'v_add_u32 v{t0}, s18, v{vL16}')
        p(f's_add_u32 s19, s19, 1')
        for k in range(5):
            p(f'ds_write_b128 v{t0}, {vr(WB+20*g+4*k,4)} offset:{1024*k}')
    p('P2_WOX:')
    p('s_waitcnt lgkmcnt(0)')
    p('; MARK 11')
    p('s_endpgm')
    p('P2_FFN:')
    p(f's_cmp_eq_u32 s{sFB}, -1')
    p('s_cbranch_scc1 P_END')
    M = 16
    p(f'v_lshrrev_b32 v{t1}, 5, v0')
    p(f'v_lshlrev_b32 v{t1}, 30, v{t1}')
    p(f'v_lshl_add_u32 v{t1}, v0, 2, v{t1}')
    p(f's_mov_b32 s16, {CAND}')
    p(f'buffer_load_dword v{t2}, v{t1}, {S4(SWS)}, s16 offen sc1')
    p(f'v_mul_u32_u24 v{M}, 3072, v0')
    p(f's_lshl_b32 s18, s{sFB}, 4')
    for w, (base, dst) in enumerate(((pG, M_G), (pU, M_U))):
        srd(p, SA, base, 640*3072)
        p(f's_mov_b32 s16, s18')
        p(f's_mov_b32 m0, {dst}')
        for k in range(10):
            p(f'buffer_load_dwordx4 v{M}, {S4(SA)}, s16 offen lds')
            if k < 9:
                p(f's_add_u32 m0, m0, 1024')
                p(f's_add_u32 s16, s16, {64*3072}')
        if w == 0:
            p('s_waitcnt vmcnt(10)')
            top2_vec(p, t2, t0, sK1, sK2, 12)
            p(f's_andn2_b32 s{sI0}, 2047, s{sK1}')
            p(f's_andn2_b32 s{sI1}, 2047, s{sK2}')
    srd(p, SA, pX, 2621440)
    for tk in range(2):
        p(f's_mov_b32 m0, {M_X + 1280*tk}')
        p(f's_mul_i32 s16, s{sI0+tk}, 1280')
        p(f'buffer_load_dwordx4 v{vL16}, {S4(SA)}, s16 offen lds')
        p('s_mov_b64 exec, 0xffff')
        p(f'buffer_load_dwordx4 v{vL16}, {S4(SA)}, s16 offen offset:1024 lds')
        p('s_mov_b64 exec, -1')
    STV = M + 100
    for tk in range(2):
        p(f's_lshl_b32 s16, s{sI0+tk}, 3')
        p(f's_add_u32 s16, s16, {STATS}')
        p(f'buffer_load_dwordx2 {vr(STV+2*tk,2)}, off, {S4(SWS)}, s16 sc1')
    srd(p, SA, pD, 1536*1280)
    p(f's_mul_i32 s16, s{sFB}, 10240')
    DW = 128
    for k in range(10):
        p(f'buffer_load_dwordx4 {vr(DW+4*k,4)}, v{vL16}, {S4(SA)}, s16 offen offset:{1024*(k&3)}')
        if k & 3 == 3: p(f's_add_u32 s16, s16, 4096')
    for r in range(4): p(f'v_mov_b32 v{M+4+r}, {ONES}')
    for r in range(4): p(f'v_mov_b32 v{M+8+r}, 0')
    p(f'v_add_u32 v{t3}, {M_ONE}, v{vL16}')
    p(f'ds_write_b128 v{t3}, {vr(M+4,4)}')
    p(f'ds_write_b128 v{t3}, {vr(M+4,4)} offset:256')
    p(f'ds_write_b128 v{t3}, {vr(M+8,4)} offset:1280')
    aX, aW, D = M, M+1, M+4
    FA = [M+8, M+12, M+16, M+20]; FB = [M+24, M+28, M+32, M+36]
    p(f'v_and_b32 v{t0}, 15, v0')
    p(f'v_cmp_lt_u32 vcc, 1, v{t0}')
    p(f'v_mul_u32_u24 v{t0}, 1280, v{t0}')
    p(f'v_mov_b32 v{t1}, {M_ONE - M_X}')
    p(f'v_cndmask_b32 v{t0}, v{t0}, v{t1}, vcc')
    p(f'v_lshrrev_b32 v{t1}, 4, v0')
    p(f'v_lshl_add_u32 v{aX}, v{t1}, 4, v{t0}')
    p(f'v_bfe_u32 v{t0}, v0, 2, 2')
    p(f'v_lshl_add_u32 v{t0}, v{t1}, 3, v{t0}')
    p(f'v_lshlrev_b32 v{aW}, 4, v{t0}')
    p(f'v_and_b32 v{t0}, 1, v0')
    p(f'v_lshl_add_u32 v{aW}, v{t0}, 3, v{aW}')
    p(f'v_bfe_u32 v{t0}, v0, 1, 1')
    p(f's_mov_b32 s16, {M_U - M_G}')
    p(f'v_mul_u32_u24 v{t0}, s16, v{t0}')
    p(f'v_add_u32 v{aW}, v{aW}, v{t0}')
    p('s_waitcnt vmcnt(0) lgkmcnt(0)')
    p('s_setprio 2')
    p('; MARK 10')
    def rdf(s):
        b = s & 3
        p(f'ds_read_b128 {vr(FA[b],4)}, v{aX} offset:{M_X + 64*s}')
        p(f'ds_read_b64_tr_b16 {vr(FB[b],2)}, v{aW} offset:{M_G + 512*s}')
        p(f'ds_read_b64_tr_b16 {vr(FB[b]+2,2)}, v{aW} offset:{M_G + 512*s + 64}')
    for s in range(3): rdf(s)
    for s in range(20):
        if s + 3 < 20:
            rdf(s + 3); p('s_waitcnt lgkmcnt(9)')
        else:
            p(f's_waitcnt lgkmcnt({3*(19-s)})')
        p(f'v_mfma_f32_16x16x32_bf16 {vr(D,4)}, {vr(FA[s&3],4)}, {vr(FB[s&3],4)}, {vr(D,4) if s else 0}')
    aH, aD = M, M+1
    for k in range(10): p(f'ds_write_b128 v{vL16}, {vr(DW+4*k,4)} offset:{M_D + 1024*k}')
    p(f'v_bfe_u32 v{t0}, v0, 2, 2')
    p(f'v_lshrrev_b32 v{t1}, 4, v0')
    p(f'v_and_b32 v{t2}, 3, v0')
    p(f'v_cmp_eq_u32 vcc, v{t0}, v{t1}')
    p(f'v_min_u32 v{t2}, 2, v{t2}')
    p(f'v_cndmask_b32 v{t2}, 2, v{t2}, vcc')
    p(f'v_lshlrev_b32 v{aH}, 4, v{t2}')
    p(f'v_add_u32 v{aH}, {M_H}, v{aH}')
    p(f'v_mul_u32_u24 v{aD}, 1280, v{t0}')
    p(f'v_lshl_add_u32 v{aD}, v{t1}, 5, v{aD}')
    p(f'v_and_b32 v{t2}, 3, v0')
    p(f'v_lshl_add_u32 v{aD}, v{t2}, 3, v{aD}')
    g = [M+8, M+9]; u = [M+10, M+11]; e = [M+12, M+13]
    for tk in range(2):
        p(f'v_fma_f32 v{g[tk]}, -v{STV+2*tk}, v{D+2}, v{D+tk}')
        p(f'v_mul_f32 v{g[tk]}, v{STV+2*tk+1}, v{g[tk]}')
    p(f'v_cvt_pk_bf16_f32 v{t0}, v{g[0]}, v{g[1]}')
    p(f'v_lshlrev_b32 v{g[0]}, 16, v{t0}')
    p(f'v_and_b32 v{g[1]}, 0xffff0000, v{t0}')
    for tk in range(2):
        p(f'v_mov_b32_dpp v{u[tk]}, v{g[tk]} row_shl:8 row_mask:0xf bank_mask:0xf bound_ctrl:1')
        p(f'v_mul_f32 v{e[tk]}, {hex(f2u(-math.log2(math.e)))}, v{g[tk]}')
    for tk in range(2): p(f'v_exp_f32 v{e[tk]}, v{e[tk]}')
    for tk in range(2): p(f'v_add_f32 v{e[tk]}, 1.0, v{e[tk]}')
    for tk in range(2): p(f'v_rcp_f32 v{e[tk]}, v{e[tk]}')
    for tk in range(2): p(f'v_mul_f32 v{g[tk]}, v{g[tk]}, v{e[tk]}')
    p(f'v_cvt_pk_bf16_f32 v{t0}, v{g[0]}, v{g[1]}')
    p(f'v_lshlrev_b32 v{g[0]}, 16, v{t0}')
    p(f'v_and_b32 v{g[1]}, 0xffff0000, v{t0}')
    for tk in range(2): p(f'v_mul_f32 v{g[tk]}, v{g[tk]}, v{u[tk]}')
    p(f'v_cvt_pk_bf16_f32 v{t0}, v{g[0]}, v{g[1]}')
    p(f'v_lshlrev_b32 v{t1}, 1, v0')
    p(f'v_add_u32 v{t1}, {M_H}, v{t1}')
    p('s_mov_b64 exec, 0xff')
    p(f'ds_write_b16 v{t1}, v{t0}')
    p(f'ds_write_b16_d16_hi v{t1}, v{t0} offset:16')
    p('s_mov_b64 exec, -1')
    HF = M+4
    p('s_waitcnt lgkmcnt(0)')
    p(f'ds_read_b128 {vr(HF,4)}, v{aH}')
    p(f's_and_b32 s16, s2, 7')
    p(f's_mul_i32 s16, s16, 5120')
    p(f's_add_u32 s16, s16, {YACC}')
    p(f's_add_u32 s17, s16, 2560')
    p(f'v_lshlrev_b32 v{t1}, 2, v0')
    FD = [M+8+4*k for k in range(10)]; DD = [M+48+4*k for k in range(10)]
    for bt in range(2):
        for k in range(5):
            t = 5*bt + k
            p(f'ds_read_b64_tr_b16 {vr(FD[t],2)}, v{aD} offset:{M_D + 128*t}')
            p(f'ds_read_b64_tr_b16 {vr(FD[t]+2,2)}, v{aD} offset:{M_D + 128*t + 4*1280}')
        for k in range(5):
            t = 5*bt + k
            p(f's_waitcnt lgkmcnt({8-2*k})')
            p(f'v_mfma_f32_16x16x32_bf16 {vr(DD[t],4)}, {vr(HF,4)}, {vr(FD[t],4)}, 0')
    for t in range(10):
        for tk in range(2):
            p(f'buffer_atomic_add_f32 v{DD[t]+tk}, v{t1}, {S4(SWS)}, s{16+tk} offen offset:{256*t}')
    p('s_setprio 0')
    p('; MARK 11')
    p('s_barrier')
    p(f's_lshl_b32 s16, s{sFB}, 8')
    p(f's_add_u32 s16, s16, {FM}')
    p('s_waitcnt vmcnt(0)')
    set_flag(p, SWS, 's16', t0)
    p('P_END:')
    p('s_endpgm')
    return max(nv, 16 + 140)
```

```python
import sys
from mcommon import *
import ph1, ph23
def build(fused=True, verbose=False, o1=(), o2=()):
    hdr = open('cdna_kernels/' + NAME + '.s.ref').read().split('; Override launch')[0]
    out = [hdr]
    if fused:
        out.append(f'; @launch grid=(256,1,1) block=(512,1,1) lds={LDS_BYTES}\n')
    else:
        out.append(f'; @launch kernel=qkv_kernel grid=(256,1,1) block=(512,1,1) lds={LDS_BYTES}\n')
        out.append(f'; @launch kernel=attn_kernel grid=(256,1,1) block=(512,1,1) lds={LDS_BYTES}\n')
    out.append('.amdgcn_target "amdgcn-amd-amdhsa--gfx950"\n.text\n')
    descs = []
    if fused:
        p = Prog(); entry(p, NAME + '_kernel', 'P_END')
        n1 = ph1.phase1(p, True, o1); n2 = ph23.phase23(p, True, o2)
        p.fix(verbose); out.append(p.text()); descs.append(kdesc(NAME + '_kernel', max(n1, n2), 90))
    else:
        p = Prog(); entry(p, 'qkv_kernel', 'P1_END'); n1 = ph1.phase1(p, False, o1); p('P1_END:'); p('s_endpgm')
        p.fix(verbose); out.append(p.text()); descs.append(kdesc('qkv_kernel', n1, 90))
        p = Prog(); entry(p, 'attn_kernel', 'P_END'); n2 = ph23.phase23(p, False, o2)
        p.fix(verbose); out.append(p.text()); descs.append(kdesc('attn_kernel', n2, 90))
    out.append('.section .rodata,"a"\n')
    out += descs
    return ''.join(out)
if __name__ == '__main__':
    open('m_split.s', 'w').write(build(False, '-v' in sys.argv))
    open('m_fused.s', 'w').write(build(True))
```
